```python
import torch

def _softmax(x, axis=-1):
    return torch.softmax(x, dim=axis)
def _gelu(x):
    return torch.nn.functional.gelu(x, approximate="tanh")
def _silu(x):
    return torch.nn.functional.silu(x)
def _sigmoid(x):
    return torch.sigmoid(x)
def _layernorm(x, axis=-1, eps=1e-5):
    m = x.mean(dim=axis, keepdim=True)
    v = x.var(dim=axis, keepdim=True, unbiased=False)
    return (x - m) / torch.sqrt(v + eps)
def _scatter_add(tgt, idx, src, axis=0):
    return tgt.clone().index_add_(axis, idx, src)
def _segment_sum(src, seg, n):
    out = torch.zeros((n,) + src.shape[1:], dtype=src.dtype)
    return out.index_add_(0, seg, src)
def _pad(x, pw):
    flat = tuple(v for pair in reversed(pw) for v in pair)
    return torch.nn.functional.pad(x, flat)

kernel_name = 'parallel_sum__linear_attn_block__moe_arch_mod__prompt'

def setup_inputs():

    _w = (lambda a: (lambda t: t.to(torch.bfloat16) if t.is_floating_point() else t)(torch.as_tensor(a)))
    def _A_setup():
        B, S, D = 1, 2048, 1024
        return {
            "x": _w((lambda *s: torch.randn(*s, dtype=torch.bfloat16) * 0.05)(B, S, D)),
            "wqkv": _w((lambda *s: torch.randn(*s, dtype=torch.bfloat16) * 0.4)(D, 3 * D)),
            "wo": _w((lambda *s: torch.randn(*s, dtype=torch.bfloat16) * 0.2)(D, D)),
        }
    _A_in = _A_setup()

    def _B_setup():
        B, S, D, F, C = 1, 2048, 1024, 3584, 1
        return {
            "x": _w((lambda *s: torch.randn(*s, dtype=torch.bfloat16) * 0.05)(B, S, D)),
            "w_r": _w((lambda *s: torch.randn(*s, dtype=torch.bfloat16) * 0.05)(D)),
            "w_gate": _w((lambda *s: torch.randn(*s, dtype=torch.bfloat16) * 0.05)(D, F)),
            "w_up": _w((lambda *s: torch.randn(*s, dtype=torch.bfloat16) * 0.05)(D, F)),
            "w_down": _w((lambda *s: torch.randn(*s, dtype=torch.bfloat16) * 0.05)(F, D)),
        }
    _B_in = _B_setup()

    return {
        "A_x": _A_in["x"],
        "A_wqkv": _A_in["wqkv"],
        "A_wo": _A_in["wo"],
        "B_x": _B_in["x"],
        "B_w_r": _B_in["w_r"],
        "B_w_gate": _B_in["w_gate"],
        "B_w_up": _B_in["w_up"],
        "B_w_down": _B_in["w_down"],
    }

def reference(A_x, A_wqkv, A_wo, B_x, B_w_r, B_w_gate, B_w_up, B_w_down):
    def _A_ref(x, wqkv, wo):
        B, S, D = x.shape
        H = 32; Dh = D // H
        qkv = (lambda x, *d: x.permute(*d))((x @ wqkv).reshape(B, S, 3, H, Dh), 2, 0, 3, 1, 4)
        q, k, v = qkv[0], qkv[1], qkv[2]
        phi = lambda t: torch.where(t > 0, t + 1, torch.exp(t)) + 1e-6
        pq, pk = phi(q), phi(k)
        kv = torch.einsum("bhsd,bhse->bhde", pk, v)
        z = torch.einsum("bhsd->bhd", pk)
        num = torch.einsum("bhqd,bhde->bhqe", pq, kv)
        den = torch.einsum("bhqd,bhd->bhq", pq, z)[..., None] + 1e-6
        o = num / den
        return (lambda x, *d: x.permute(*d))(o, 0, 2, 1, 3).reshape(B, S, D) @ wo

    def _B_ref(x, w_r, w_gate, w_up, w_down):
        B, S, D = x.shape
        C = 1
        r = x @ w_r
        idx = torch.argsort(-r, axis=-1)[:, :C]
        idx_e = (lambda x, n, axis: torch.repeat_interleave(x, n, dim=axis))(idx.reshape(B, C, 1), D, axis=2)
        x_sel = (lambda x, i, axis: torch.take_along_dim(x, i, dim=axis))(x, idx_e, axis=1)
        g = _silu(x_sel @ w_gate)
        u = x_sel @ w_up
        y = (g * u) @ w_down
        r_sel = _sigmoid((lambda x, i, axis: torch.take_along_dim(x, i, dim=axis))(r, idx, axis=1))
        y = y * r_sel.reshape(B, C, 1)
        b_off = (torch.arange(B) * S).reshape(B, 1)
        flat_idx = (idx + b_off).reshape(B * C)
        zero = (x * 0.0).reshape(B * S, D)
        upd = _scatter_add(zero, flat_idx, y.reshape(B * C, D), axis=0)
        return x + upd.reshape(B, S, D)

    x = A_x
    xn = _layernorm(x, axis=-1)
    return x + _A_ref(xn, A_wqkv, A_wo) + _B_ref(xn, B_w_r, B_w_gate, B_w_up, B_w_down)
```

```python
NAME = "parallel_sum__linear_attn_block__moe_arch_mod__prompt"
class Asm:
    def __init__(self):
        self.o = []
        self.nlab = 0
    def e(self, *ss):
        for s in ss:
            self.o.append("    " + s)
    def lab(self, s): self.o.append(s + ":")
    def raw(self, s): self.o.append(s)
    def newlab(self, p="L"):
        self.nlab += 1
        return f"{p}_{self.nlab}"
    def kernel_begin(self, name):
        self.raw(f".globl {name}\n.p2align 8\n.type {name},@function\n{name}:")
    def text(self): return "\n".join(self.o) + "\n"
    def srd(self, d, b, size):
        self.e(f"s_mov_b32 s{d}, s{b}", f"s_and_b32 s{d+1}, s{b+1}, 0xffff", f"s_mov_b32 s{d+2}, {hex(size)}", f"s_mov_b32 s{d+3}, 0x20000")
    def srd_off(self, d, b, off, size):
        self.e(f"s_add_u32 s{d}, s{b}, {hex(off)}", f"s_addc_u32 s{d+1}, s{b+1}, 0", f"s_and_b32 s{d+1}, s{d+1}, 0xffff", f"s_mov_b32 s{d+2}, {hex(size)}", f"s_mov_b32 s{d+3}, 0x20000")
    def wave_allreduce(self, regs, tmps, op="v_add_f32"):
        n = len(regs)
        pad = max(0, 2 - (n - 1))
        self.e("s_nop 1")
        for ctrl in ("quad_perm:[1,0,3,2]", "quad_perm:[2,3,0,1]", "row_half_mirror", "row_mirror"):
            if pad: self.e(f"s_nop {pad-1}")
            for r in regs:
                self.e(f"{op}_dpp v{r}, v{r}, v{r} {ctrl} row_mask:0xf bank_mask:0xf")
        for sw in ("v_permlane16_swap_b32", "v_permlane32_swap_b32"):
            for r, t in zip(regs, tmps):
                self.e(f"v_mov_b32 v{t}, v{r}")
            if pad: self.e(f"s_nop {pad-1}")
            if n == 1: self.e("s_nop 0")
            for r, t in zip(regs, tmps):
                self.e(f"{sw} v{r}, v{t}")
            self.e("s_nop 0")
            for r, t in zip(regs, tmps):
                self.e(f"{op} v{r}, v{r}, v{t}")

def kd(name, vgpr, sgpr=96):
    acc = (vgpr + 3) // 4 * 4
    return f""".amdhsa_kernel {name}
  .amdhsa_next_free_vgpr {vgpr}
  .amdhsa_next_free_sgpr {sgpr}
  .amdhsa_accum_offset {acc}
  .amdhsa_group_segment_fixed_size 0
  .amdhsa_kernarg_size 88
  .amdhsa_user_sgpr_count 2
  .amdhsa_user_sgpr_kernarg_segment_ptr 1
  .amdhsa_system_sgpr_workgroup_id_x 1
  .amdhsa_float_denorm_mode_32 3
.end_amdhsa_kernel
"""
```

```python
import sys, os
from lib import *
WS_XN, WS_O, WS_PQ, WS_KVP, WS_ZP = 0x0, 0x400000, 0x800000, 0xC00000, 0xD00000
WS_R, WS_KEY, WS_GU, WS_YP = 0xD10000, 0xD12000, 0xD20000, 0xD40000
WS_SIZE = 0x10000000
LOG2E = 0x3FB8AA3B
EPS6 = 0x358637BD
EPS5 = 0x3727C5AC
NT = os.environ.get("NT", "")
EXTRA = int(os.environ.get("EXTRA", 0))
a = Asm(); e = a.e
hdr = ["; @launch kernel=ln_kernel grid=(256,1,1) block=(512,1,1) lds=64",
       "; @launch kernel=qkv_kernel grid=(256,1,1) block=(512,1,1) lds=163840",
       "; @launch kernel=o_kernel grid=(256,1,1) block=(512,1,1) lds=8192",
       "; @launch kernel=out_kernel grid=(256,1,1) block=(512,1,1) lds=147456"]
for _ in range(EXTRA): hdr.append("; @launch kernel=nop_kernel grid=(256,1,1) block=(64,1,1) lds=0")
a.raw("\n".join(hdr))
a.raw('.amdgcn_target "amdgcn-amd-amdhsa--gfx950"\n.text')

def wave_lane(sw=25):
    e("v_lshrrev_b32 v1, 6, v0", "v_and_b32 v0, 63, v0", "s_nop 0", f"v_readfirstlane_b32 s{sw}, v1")

def bf16r(v, tmp=None):
    e(f"v_cvt_pk_bf16_f32 v{v}, v{v}, v{v}", f"v_and_b32 v{v}, 0xffff0000, v{v}")

def find_idx(srdws, vt, sidx):
    e(f"v_lshlrev_b32 v{vt+4}, 4, v0", f"s_mov_b32 s{sidx}, {hex(WS_KEY)}",
      f"buffer_load_dwordx4 v[{vt}:{vt+3}], v{vt+4}, s[{srdws}:{srdws+3}], s{sidx} offen",
      "s_waitcnt vmcnt(0)",
      f"v_max_u32 v{vt}, v{vt}, v{vt+1}", f"v_max3_u32 v{vt}, v{vt}, v{vt+2}, v{vt+3}")
    a.wave_allreduce([vt], [vt+1], op="v_max_u32")
    e("s_nop 0", f"v_readfirstlane_b32 s{sidx}, v{vt}", "s_nop 3",
      f"s_and_b32 s{sidx}, s{sidx}, 0x7ff", f"s_sub_u32 s{sidx}, 2047, s{sidx}")

a.kernel_begin("ln_kernel")
e("s_cmp_ge_u32 s2, 256", "s_cbranch_scc1 L_ln_end")
e("s_load_dwordx2 s[4:5], s[0:1], 0", "s_load_dwordx2 s[6:7], s[0:1], 32", "s_load_dwordx2 s[28:29], s[0:1], 80")
wave_lane()
e("s_lshl_b32 s20, s2, 3", "s_add_u32 s20, s20, s25")
e("s_lshl_b32 s21, s20, 11")
e("v_lshlrev_b32 v2, 4, v0")
e("s_waitcnt lgkmcnt(0)")
a.srd(8, 4, 0x400000); a.srd(12, 6, 2048); a.srd(16, 28, WS_SIZE)
e(f"buffer_load_dwordx4 v[4:7], v2, s[8:11], s21 offen {NT}", f"buffer_load_dwordx4 v[8:11], v2, s[8:11], s21 offen offset:1024 {NT}",
  "buffer_load_dwordx4 v[40:43], v2, s[12:15], 0 offen", "buffer_load_dwordx4 v[44:47], v2, s[12:15], 0 offen offset:1024",
  "s_waitcnt vmcnt(2)")
for i in range(8):
    e(f"v_lshlrev_b32 v{16+2*i}, 16, v{4+i}", f"v_and_b32 v{17+2*i}, 0xffff0000, v{4+i}")
e("v_add_f32 v12, v16, v17")
for i in range(2, 16): e(f"v_add_f32 v12, v12, v{16+i}")
a.wave_allreduce([12], [13])
e("v_mul_f32 v12, 0x3a800000, v12")
e("v_sub_f32 v14, v16, v12", "v_mul_f32 v13, v14, v14")
for i in range(1, 16): e(f"v_sub_f32 v14, v{16+i}, v12", "v_fmac_f32 v13, v14, v14")
a.wave_allreduce([13], [14])
e("v_mul_f32 v13, 0x3a800000, v13")
bf16r(12); bf16r(13)
e(f"v_add_f32 v13, {hex(EPS5)}, v13"); bf16r(13)
e("v_sqrt_f32 v13, v13", "s_nop 0"); bf16r(13)
e("v_rcp_f32 v13, v13", "s_nop 0")
for i in range(16): e(f"v_sub_f32 v{16+i}, v{16+i}, v12")
for i in range(8): e(f"v_cvt_pk_bf16_f32 v{4+i}, v{16+2*i}, v{17+2*i}")
for i in range(8):
    e(f"v_lshlrev_b32 v{16+2*i}, 16, v{4+i}", f"v_and_b32 v{17+2*i}, 0xffff0000, v{4+i}")
for i in range(16): e(f"v_mul_f32 v{16+i}, v{16+i}, v13")
for i in range(8): e(f"v_cvt_pk_bf16_f32 v{4+i}, v{16+2*i}, v{17+2*i}")
e(f"s_add_u32 s22, s21, {hex(WS_XN)}")
e("buffer_store_dwordx4 v[4:7], v2, s[16:19], s22 offen", "buffer_store_dwordx4 v[8:11], v2, s[16:19], s22 offen offset:1024")
e("v_mov_b32 v14, 0", "s_waitcnt vmcnt(2)")
for i in range(8): e(f"v_dot2_f32_bf16 v14, v{4+i}, v{40+i}, v14")
e("s_nop 2")
a.wave_allreduce([14], [15])
e("v_ashrrev_i32 v15, 31, v14", "v_or_b32 v15, 0x80000000, v15", "v_xor_b32 v15, v15, v14",
  "v_and_b32 v15, 0xfffff800, v15", "s_sub_u32 s23, 2047, s20", "v_or_b32 v15, s23, v15")
e("s_lshl_b32 s22, s20, 2", f"s_add_u32 s22, s22, {hex(WS_R)}", "s_lshl_b32 s23, s25, 2", "v_mov_b32 v3, s23", "v_mov_b32 v1, 0",
  "s_mov_b64 exec, 1",
  "buffer_store_dword v14, v1, s[16:19], s22 offen", "ds_write_b32 v3, v15", "s_waitcnt lgkmcnt(0)", "s_barrier",
  "s_cmp_lg_u32 s25, 0", "s_cbranch_scc1 L_ln_end",
  "ds_read_b128 v[4:7], v1", "ds_read_b128 v[8:11], v1 offset:16", "s_waitcnt lgkmcnt(0)",
  "v_max3_u32 v4, v4, v5, v6", "v_max3_u32 v4, v4, v7, v8", "v_max3_u32 v4, v4, v9, v10", "v_max_u32 v4, v4, v11",
  "s_lshl_b32 s22, s2, 2", f"s_add_u32 s22, s22, {hex(WS_KEY)}",
  "buffer_store_dword v4, v1, s[16:19], s22 offen")
a.lab("L_ln_end"); e("s_endpgm")

STAGE = 40960
a.kernel_begin("qkv_kernel")
e("s_cmp_ge_u32 s2, 256", "s_cbranch_scc1 L_qkv_end")
e("s_load_dwordx2 s[6:7], s[0:1], 8", "s_load_dwordx2 s[28:29], s[0:1], 80", "s_load_dwordx4 s[40:43], s[0:1], 40")
def map1():
    e("s_and_b32 s20, s2, 7", "s_lshr_b32 s21, s2, 3", "s_and_b32 s22, s20, 1", "s_lshl_b32 s22, s22, 3",
      "s_and_b32 s23, s21, 7", "s_add_u32 s22, s22, s23",
      "s_lshr_b32 s23, s20, 1", "s_lshl_b32 s23, s23, 2", "s_lshr_b32 s24, s21, 3", "s_add_u32 s23, s23, s24")
map1(); wave_lane()
e("s_waitcnt lgkmcnt(0)")
a.srd_off(8, 28, WS_XN, 0x400000); a.srd(12, 6, 0x600000); a.srd(16, 28, WS_SIZE)
a.srd(44, 40, 7340032); a.srd(48, 42, 7340032)
e("s_cmp_ge_u32 s25, 4", "s_cbranch_scc1 L_qkv_loader")
e("s_lshr_b32 s26, s25, 1", "s_and_b32 s27, s25, 1")
def a_addr(dst, swr_shift_sgpr):
    e("v_and_b32 v1, 31, v0", "v_lshrrev_b32 v2, 5, v0", "v_lshrrev_b32 v3, 1, v1", "v_and_b32 v3, 7, v3", "v_xor_b32 v3, v3, v2",
      "v_lshlrev_b32 v3, 4, v3", "v_lshlrev_b32 v1, 7, v1", "v_add_u32 v1, v1, v3", f"v_add_u32 v{dst}, s{swr_shift_sgpr}, v1")
def b_addr(dst, shd):
    e("v_lshrrev_b32 v1, 5, v0", "v_lshlrev_b32 v1, 10, v1", "v_bfe_u32 v2, v0, 2, 2", "v_lshlrev_b32 v3, 7, v2", "v_add_u32 v1, v1, v3",
      "v_lshrrev_b32 v2, 1, v2", f"v_xor_b32 v2, s{shd}, v2", "v_lshlrev_b32 v2, 6, v2", "v_add_u32 v1, v1, v2",
      "v_bfe_u32 v2, v0, 4, 1", "v_lshlrev_b32 v2, 5, v2", "v_add_u32 v1, v1, v2",
      "v_and_b32 v2, 3, v0", "v_lshlrev_b32 v2, 3, v2", f"v_add_u32 v{dst}, v1, v2")
e("s_lshl_b32 s30, s26, 13")
a_addr(4, 30)
for kk in range(1, 4): e(f"v_xor_b32 v{4+kk}, {kk<<5}, v4")
for kk in range(4): e(f"v_add_u32 v{8+kk}, {2*STAGE}, v{4+kk}")
b_addr(12, 27)
for s in (3, 2, 1, 0): e(f"v_add_u32 v{12+s}, {s*STAGE+16384}, v12")
ACC = 64
for r in range(96): e(f"v_mov_b32 v{ACC+r}, 0")
FR = [16, 40]
def reads(s, kk, st):
    f = FR[st]; abase = 4 + kk if s < 2 else 8 + kk; aoff = (s & 1) * STAGE
    return [f"ds_read_b128 v[{f}:{f+3}], v{abase} offset:{aoff}",
            f"ds_read_b64_tr_b16 v[{f+8}:{f+9}], v{12+s} offset:{kk*2048}",
            f"ds_read_b64_tr_b16 v[{f+10}:{f+11}], v{12+s} offset:{kk*2048+512}",
            f"ds_read_b128 v[{f+4}:{f+7}], v{abase} offset:{aoff+4096}",
            f"ds_read_b64_tr_b16 v[{f+12}:{f+13}], v{12+s} offset:{8192+kk*2048}",
            f"ds_read_b64_tr_b16 v[{f+14}:{f+15}], v{12+s} offset:{8192+kk*2048+512}",
            f"ds_read_b64_tr_b16 v[{f+16}:{f+17}], v{12+s} offset:{16384+kk*2048}",
            f"ds_read_b64_tr_b16 v[{f+18}:{f+19}], v{12+s} offset:{16384+kk*2048+512}"]
def mfmas(st):
    f = FR[st]; L = []
    for c in range(3):
        for rb in range(2):
            d = ACC + (rb*3 + c)*16
            A = f"v[{f+4*rb}:{f+4*rb+3}]"; B = f"v[{f+8+4*c}:{f+8+4*c+3}]"
            if c == 0: A, B = B, A
            L.append(f"v_mfma_f32_32x32x16_bf16 v[{d}:{d+15}], {A}, {B}, v[{d}:{d+15}]")
    return L
e("s_barrier")
e(*reads(0, 0, 0))
e("s_mov_b32 s31, 0")
a.lab("L_qkv_cloop")
st = 0
for s in range(4):
    for kk in range(4):
        e("s_waitcnt lgkmcnt(0)")
        if kk == 3:
            e("s_barrier"); R = reads((s+1) % 4, 0, st ^ 1)
        else: R = reads(s, kk+1, st ^ 1)
        M = mfmas(st)
        e(M[0], R[0], R[1], R[2], M[1], R[3], R[4], R[5], M[2], R[6], R[7], M[3], M[4], M[5])
        st ^= 1
e("s_add_u32 s31, s31, 1", "s_cmp_lt_u32 s31, 4", "s_cbranch_scc1 L_qkv_cloop")
e("s_waitcnt lgkmcnt(0)")
e(f"s_mov_b32 s34, {hex(LOG2E)}", f"s_mov_b32 s35, {hex(LOG2E)}", f"s_mov_b32 s36, {hex(EPS6)}", "s_nop 12")
def phi(src, dst):
    for p in range(8):
        t = 2 + 2*(p & 1); r = src + 2*p
        e(f"v_pk_mul_f32 v[{t}:{t+1}], v[{r}:{r+1}], s[34:35]",
          f"v_exp_f32_e64 v{t}, v{t} clamp", f"v_exp_f32_e64 v{t+1}, v{t+1} clamp",
          f"v_max_f32 v{r}, s36, v{r}", f"v_max_f32 v{r+1}, s36, v{r+1}",
          f"v_pk_add_f32 v[{t}:{t+1}], v[{t}:{t+1}], v[{r}:{r+1}]",
          f"v_cvt_pk_bf16_f32 v{dst+p}, v{t}, v{t+1}")
PK = 16; VB = 32; ONES = 6; KV = 160; Z = 176; PQ = 48
phi(ACC+16, PK); phi(ACC+64, PK+8)
for rb in range(2):
    for p in range(8):
        r = ACC + (rb*3+2)*16 + 2*p
        e(f"v_cvt_pk_bf16_f32 v{VB+8*rb+p}, v{r}, v{r+1}")
for q in range(4): e(f"v_mov_b32 v{8+q}, 0x3f803f80")
e("s_nop 1")
for q in range(4):
    c = "0" if q == 0 else f"v[{KV}:{KV+15}]"
    e(f"v_mfma_f32_32x32x16_bf16 v[{KV}:{KV+15}], v[{PK+4*q}:{PK+4*q+3}], v[{VB+4*q}:{VB+4*q+3}], {c}")
for q in range(4):
    c = "0" if q == 0 else f"v[{Z}:{Z+15}]"
    e(f"v_mfma_f32_32x32x16_bf16 v[{Z}:{Z+15}], v[{PK+4*q}:{PK+4*q+3}], v[8:11], {c}")
phi(ACC, PQ); phi(ACC+48, PQ+8)
e("v_lshlrev_b32 v1, 4, v0", "s_lshl_b32 s30, s2, 2", "s_add_u32 s30, s30, s25", "s_lshl_b32 s30, s30, 12", f"s_add_u32 s30, s30, {hex(WS_PQ)}")
for q in range(4): e(f"buffer_store_dwordx4 v[{PQ+4*q}:{PQ+4*q+3}], v1, s[16:19], s30 offen offset:{q*1024}")
e("s_lshl_b32 s30, s27, 13", "v_add_u32 v2, s30, v1")
e("s_cmp_eq_u32 s26, 0", "s_cbranch_scc1 L_qkv_wr0")
for q in range(8): e(f"ds_write_b128 v2, v[{KV+4*q}:{KV+4*q+3}] offset:{q*1024}")
e("s_waitcnt lgkmcnt(0)", "s_barrier", "s_endpgm")
a.lab("L_qkv_wr0")
e("s_barrier")
for q in range(8): e(f"ds_read_b128 v[{192+4*q}:{195+4*q}], v2 offset:{q*1024}")
e("s_waitcnt lgkmcnt(0)")
for q in range(16): e(f"v_pk_add_f32 v[{KV+2*q}:{KV+2*q+1}], v[{KV+2*q}:{KV+2*q+1}], v[{192+2*q}:{193+2*q}]")
for p in range(8): e(f"v_cvt_pk_bf16_f32 v{PK+p}, v{KV+2*p}, v{KV+2*p+1}")
e("s_lshl_b32 s30, s23, 1", "s_add_u32 s30, s30, s27", "s_lshl_b32 s30, s30, 4", "s_add_u32 s30, s30, s22",
  "s_lshl_b32 s31, s30, 11", f"s_add_u32 s31, s31, {hex(WS_KVP)}",
  f"buffer_store_dwordx4 v[{PK}:{PK+3}], v1, s[16:19], s31 offen", f"buffer_store_dwordx4 v[{PK+4}:{PK+7}], v1, s[16:19], s31 offen offset:1024",
  "s_lshl_b32 s31, s30, 7", f"s_add_u32 s31, s31, {hex(WS_ZP)}", "v_lshlrev_b32 v2, 1, v0",
  "s_mov_b32 exec_lo, 1", "s_mov_b32 exec_hi, 1")
for q in range(4): e(f"buffer_store_dwordx4 v[{Z+4*q}:{Z+4*q+3}], v2, s[16:19], s31 offen offset:{q*16}")
e("s_endpgm")
a.lab("L_qkv_loader")
e("s_sub_u32 s26, s25, 4")
def a_voff(srow_tile):
    e(f"s_lshl_b32 s30, s{srow_tile}, 7", "s_lshl_b32 s31, s26, 5", "s_add_u32 s30, s30, s31",
      "v_lshrrev_b32 v1, 3, v0", "v_add_u32 v1, s30, v1", "v_lshlrev_b32 v1, 11, v1",
      "v_and_b32 v2, 7, v0", "v_lshrrev_b32 v3, 4, v0", "v_xor_b32 v2, v2, v3", "v_lshlrev_b32 v2, 4, v2",
      "v_add_u32 v4, v1, v2", "v_xor_b32 v5, 64, v4", "v_add_u32 v5, 16384, v5", "v_add_u32 v6, 32768, v4", "v_add_u32 v7, 32768, v5")
def b_voff(rowbytes, scol):
    e("s_lshl_b32 s30, s26, 4", "v_lshrrev_b32 v1, 3, v0", "v_add_u32 v1, s30, v1", f"v_mul_u32_u24 v1, {rowbytes}, v1",
      "v_bfe_u32 v3, v0, 4, 1", "v_lshlrev_b32 v3, 2, v3", "v_and_b32 v2, 7, v0", "v_xor_b32 v2, v2, v3", "v_lshlrev_b32 v2, 4, v2",
      "v_add_u32 v1, v1, v2", f"s_lshl_b32 s30, s{scol}, 7", "v_add_u32 v8, s30, v1")
a_voff(22); b_voff(6144, 23)
for sec in range(3):
    for p in range(2):
        if sec or p: e(f"v_add_u32 v{8+sec*2+p}, {sec*2048 + p*8*6144}, v8")
e("s_lshl_b32 s32, s26, 12", "s_lshl_b32 s33, s26, 11", "s_add_u32 s33, s33, 16384", "s_mov_b32 s34, 0", "s_mov_b32 s35, 0", "s_mov_b32 s36, 0")
def issue():
    e("s_add_u32 s37, s36, s32", "s_add_u32 s38, s36, s33")
    for q in range(4): e(f"s_add_u32 m0, s37, {q*1024}", "s_nop 0", f"buffer_load_dwordx4 v{4+q}, s[8:11], s34 offen lds")
    for sec in range(3):
        for p in range(2): e(f"s_add_u32 m0, s38, {sec*8192 + p*1024}", "s_nop 0", f"buffer_load_dwordx4 v{8+sec*2+p}, s[12:15], s35 offen lds")
    e("s_add_u32 s34, s34, 128", "s_add_u32 s35, s35, 393216", f"s_add_u32 s36, s36, {STAGE}", f"s_cmp_eq_u32 s36, {4*STAGE}", "s_cselect_b32 s36, 0, s36")
issue(); issue()
e("s_waitcnt vmcnt(10)", "s_barrier")
issue(); issue()
e("s_mov_b32 s31, 1")
a.lab("L_qkv_lloop")
e("s_waitcnt vmcnt(20)", "s_barrier")
issue()
e("s_add_u32 s31, s31, 1", "s_cmp_lt_u32 s31, 13", "s_cbranch_scc1 L_qkv_lloop")
e("s_waitcnt vmcnt(20)", "s_barrier", "s_waitcnt vmcnt(10)", "s_barrier", "s_waitcnt vmcnt(0)", "s_barrier", "s_barrier")
e("s_cmp_ge_u32 s2, 224", "s_cbranch_scc1 L_qkv_end")
e("s_mul_i32 s30, s2, 1171", "s_lshr_b32 s30, s30, 16",
  "s_mul_i32 s31, s30, 56", "s_sub_u32 s31, s2, s31",
  "s_lshl_b32 s32, s30, 8", "s_lshl_b32 s33, s26, 6", "s_add_u32 s32, s32, s33",
  "v_lshrrev_b32 v1, 3, v0", "v_add_u32 v1, s32, v1",
  "v_mul_u32_u24 v2, 7168, v1", "v_and_b32 v3, 7, v0", "v_lshlrev_b32 v3, 4, v3", "v_add_u32 v2, v2, v3",
  "s_lshl_b32 s33, s31, 7", "v_add_u32 v2, s33, v2", "s_mov_b32 s34, 0")
for n in range(8):
    e(f"buffer_load_dwordx4 v[{64+4*n}:{67+4*n}], v2, s[44:47], s34 offen {NT}", f"buffer_load_dwordx4 v[{96+4*n}:{99+4*n}], v2, s[48:51], s34 offen {NT}",
      "s_add_u32 s34, s34, 57344")
find_idx(16, 16, 39)
e("v_lshlrev_b32 v1, 1, v1", "s_lshl_b32 s34, s39, 11")
for n in range(8): e(f"buffer_load_ushort v{24+n}, v1, s[8:11], s34 offen offset:{16*n}")
for c in range(16): e(f"v_mov_b32 v{40+c}, 0")
e("s_waitcnt vmcnt(0)")
for n in range(8): e(f"v_lshlrev_b32 v{32+n}, 16, v{24+n}")
for n in range(8):
    for m in range(2):
        for c in range(4):
            w = 64 + 32*m + 4*n + c
            e(f"v_dot2_f32_bf16 v{40+8*m+2*c}, v{w}, v{24+n}, v{40+8*m+2*c}", f"v_dot2_f32_bf16 v{41+8*m+2*c}, v{w}, v{32+n}, v{41+8*m+2*c}")
e("s_nop 2")
for c in range(8): e(f"v_permlane32_swap_b32 v{40+c}, v{48+c}")
e("s_nop 0")
for c in range(8): e(f"v_add_f32 v{40+c}, v{40+c}, v{48+c}")
e("s_nop 1")
for c in range(4): e(f"v_permlane16_swap_b32 v{40+c}, v{44+c}")
e("s_nop 0")
for c in range(4): e(f"v_add_f32 v{40+c}, v{40+c}, v{44+c}")
e("s_nop 1")
for c in range(4): e(f"v_add_f32_dpp v{40+c}, v{40+c}, v{40+c} row_ror:8 row_mask:0xf bank_mask:0xf")
e("v_lshlrev_b32 v1, 4, v0", "s_lshl_b32 s33, s26, 10", "s_add_u32 s33, s33, 16384", "v_add_u32 v2, s33, v1",
  "ds_write_b128 v2, v[40:43]", "s_waitcnt lgkmcnt(0)", "s_barrier",
  "s_cmp_lg_u32 s26, 0", "s_cbranch_scc1 L_qkv_end")
for q in range(1, 4): e(f"ds_read_b128 v[{40+4*q}:{43+4*q}], v2 offset:{q*1024}")
e("s_waitcnt lgkmcnt(0)")
for q in range(1, 4):
    for c in range(4): e(f"v_add_f32 v{40+c}, v{40+c}, v{40+4*q+c}")
e("v_lshrrev_b32 v1, 5, v0", "v_mul_u32_u24 v1, 14336, v1", "v_and_b32 v2, 7, v0", "v_lshlrev_b32 v2, 5, v2", "v_add_u32 v1, v1, v2",
  "v_bfe_u32 v2, v0, 4, 1", "v_lshlrev_b32 v2, 4, v2", "v_add_u32 v1, v1, v2",
  "s_mul_i32 s30, s30, 28672", "s_lshl_b32 s31, s31, 8", "s_add_u32 s30, s30, s31", f"s_add_u32 s30, s30, {hex(WS_GU)}",
  "s_mov_b32 exec_lo, 0x00ff00ff", "s_mov_b32 exec_hi, 0x00ff00ff",
  "buffer_store_dwordx4 v[40:43], v1, s[16:19], s30 offen")
a.lab("L_qkv_end"); e("s_endpgm")

a.kernel_begin("o_kernel")
e("s_cmp_ge_u32 s2, 256", "s_cbranch_scc1 L_o_end")
e("s_load_dwordx2 s[6:7], s[0:1], 56", "s_load_dwordx2 s[28:29], s[0:1], 80")
map1(); wave_lane()
e("s_waitcnt lgkmcnt(0)")
a.srd(12, 6, 7340032); a.srd(16, 28, WS_SIZE)
e("s_cmp_ge_u32 s25, 4", "s_cbranch_scc1 L_o_gemv")
e("s_lshr_b32 s26, s25, 1", "s_and_b32 s27, s25, 1")
e("v_lshlrev_b32 v1, 4, v0", "s_lshl_b32 s30, s23, 1", "s_add_u32 s30, s30, s27",
  "s_lshl_b32 s31, s30, 11", f"s_add_u32 s31, s31, {hex(WS_ZP)}", "v_lshlrev_b32 v2, 5, v0",
  "buffer_load_dwordx4 v[8:11], v2, s[16:19], s31 offen", "buffer_load_dwordx4 v[12:15], v2, s[16:19], s31 offen offset:16",
  "s_lshl_b32 s31, s30, 15", f"s_add_u32 s31, s31, {hex(WS_KVP)}")
for p in range(16):
    e(f"buffer_load_dwordx4 v[{64+8*p}:{67+8*p}], v1, s[16:19], s31 offen offset:{(p&1)*2048}",
      f"buffer_load_dwordx4 v[{68+8*p}:{71+8*p}], v1, s[16:19], s31 offen offset:{(p&1)*2048+1024}")
    if p & 1: e("s_add_u32 s31, s31, 4096")
e("s_lshl_b32 s31, s2, 2", "s_add_u32 s31, s31, s25", "s_lshl_b32 s31, s31, 12", f"s_add_u32 s31, s31, {hex(WS_PQ)}")
for q in range(4): e(f"buffer_load_dwordx4 v[{16+4*q}:{19+4*q}], v1, s[16:19], s31 offen offset:{q*1024}")
e("s_waitcnt vmcnt(36)")
for ctrl in ("row_ror:4", "row_ror:8"):
    for c in range(8): e(f"v_add_f32_dpp v{8+c}, v{8+c}, v{8+c} {ctrl} row_mask:0xf bank_mask:0xf")
for sw in ("v_permlane16_swap_b32", "v_permlane32_swap_b32"):
    for c in range(8): e(f"v_mov_b32 v{32+c}, v{8+c}")
    for c in range(8): e(f"{sw} v{8+c}, v{32+c}")
    for c in range(8): e(f"v_add_f32 v{8+c}, v{8+c}, v{32+c}")
e("s_lshl_b32 s31, s25, 7", "v_and_b32 v3, 3, v0", "v_lshlrev_b32 v3, 5, v3", "v_add_u32 v3, s31, v3",
  "ds_write_b128 v3, v[8:11]", "ds_write_b128 v3, v[12:15] offset:16",
  "v_lshrrev_b32 v3, 5, v0", "v_lshlrev_b32 v3, 6, v3", "v_add_u32 v3, s31, v3", "s_waitcnt lgkmcnt(0)")
for q in range(4): e(f"ds_read_b128 v[{32+4*q}:{35+4*q}], v3 offset:{16*q}")
e("v_mov_b32 v4, 0x3f80", "v_mov_b32 v5, 0x3f800000")
for c in range(16): e(f"v_mov_b32 v{48+c}, 0")
e("s_waitcnt lgkmcnt(0)")
for p in range(8): e(f"v_cvt_pk_bf16_f32 v{8+p}, v{32+2*p}, v{33+2*p}")
for p in range(16):
    e(f"s_waitcnt vmcnt({4 + 2*(15-p)})")
    for c in range(8):
        e(f"v_dot2_f32_bf16 v{48+2*c}, v{64+8*p+c}, v4, v{48+2*c}", f"v_dot2_f32_bf16 v{49+2*c}, v{64+8*p+c}, v5, v{49+2*c}")
e("s_nop 2")
for p in range(8): e(f"v_cvt_pk_bf16_f32 v{32+p}, v{48+2*p}, v{49+2*p}")
e("s_waitcnt vmcnt(0)", "s_nop 0")
for rb in range(2):
    N = 64 + 32*rb; D = N + 16
    e(f"v_mfma_f32_32x32x16_bf16 v[{N}:{N+15}], v[32:35], v[{16+8*rb}:{19+8*rb}], 0",
      f"v_mfma_f32_32x32x16_bf16 v[{N}:{N+15}], v[36:39], v[{20+8*rb}:{23+8*rb}], v[{N}:{N+15}]",
      f"v_mfma_f32_32x32x16_bf16 v[{D}:{D+15}], v[8:11], v[{16+8*rb}:{19+8*rb}], 0",
      f"v_mfma_f32_32x32x16_bf16 v[{D}:{D+15}], v[12:15], v[{20+8*rb}:{23+8*rb}], v[{D}:{D+15}]")
e("s_lshl_b32 s31, s22, 7", "s_lshl_b32 s32, s26, 6", "s_add_u32 s31, s31, s32", "v_and_b32 v1, 31, v0", "v_add_u32 v1, s31, v1",
  "v_lshlrev_b32 v1, 11, v1", "v_lshrrev_b32 v2, 5, v0", "v_lshlrev_b32 v2, 4, v2", "v_add_u32 v1, v1, v2",
  "s_lshl_b32 s31, s30, 6", f"s_add_u32 s31, s31, {hex(WS_O)}", "s_nop 7")
for rb in range(2):
    N = 64 + 32*rb; D = N + 16
    e(f"v_add_f32 v{D}, {hex(EPS6)}, v{D}", f"v_rcp_f32 v{D}, v{D}", "s_nop 0")
    for r in range(16): e(f"v_mul_f32 v{N+r}, v{N+r}, v{D}")
    for p in range(8): e(f"v_cvt_pk_bf16_f32 v{40+8*rb+p}, v{N+2*p}, v{N+2*p+1}")
    e("s_nop 1")
    for g in (0, 4):
        b = 40 + 8*rb + g
        e(f"v_permlane32_swap_b32 v{b}, v{b+2}", f"v_permlane32_swap_b32 v{b+1}, v{b+3}")
    e(f"buffer_store_dwordx4 v[{40+8*rb}:{43+8*rb}], v1, s[16:19], s31 offen", f"buffer_store_dwordx4 v[{44+8*rb}:{47+8*rb}], v1, s[16:19], s31 offen offset:32")
    if rb == 0: e("s_add_u32 s31, s31, 65536")
e("s_endpgm")
a.lab("L_o_gemv")
e("s_sub_u32 s26, s25, 4", "s_and_b32 s30, s2, 15", "s_lshr_b32 s31, s2, 4",
  "s_mul_i32 s32, s31, 224", "s_mul_i32 s33, s26, 56", "s_add_u32 s32, s32, s33",
  "v_lshrrev_b32 v1, 3, v0", "v_add_u32 v2, s32, v1", "v_lshlrev_b32 v2, 11, v2", "v_and_b32 v3, 7, v0", "v_lshlrev_b32 v3, 4, v3", "v_add_u32 v2, v2, v3",
  "s_lshl_b32 s34, s30, 7")
for n in range(7):
    e(f"buffer_load_dwordx4 v[{64+4*n}:{67+4*n}], v2, s[12:15], s34 offen {NT}", "s_add_u32 s34, s34, 16384")
e("v_min_u32 v3, 55, v0", "v_add_u32 v3, s32, v3", "v_lshlrev_b32 v3, 2, v3", f"s_mov_b32 s34, {hex(WS_GU)}")
for s in range(8):
    e(f"buffer_load_dword v{16+s}, v3, s[16:19], s34 offen", "s_add_u32 s34, s34, 14336")
e("s_waitcnt vmcnt(0)",
  "v_add_f32 v16, v16, v18", "v_add_f32 v17, v17, v19", "v_add_f32 v20, v20, v22", "v_add_f32 v21, v21, v23",
  "v_add_f32 v16, v16, v20", "v_add_f32 v17, v17, v21")
bf16r(16); bf16r(17)
e(f"v_mul_f32 v18, {hex(LOG2E ^ 0x80000000)}, v16", "v_exp_f32 v18, v18", "s_nop 0", "v_add_f32 v18, 1.0, v18", "v_rcp_f32 v18, v18", "s_nop 0",
  "v_mul_f32 v16, v16, v18")
bf16r(16)
e("v_mul_f32 v16, v16, v17", "v_cvt_pk_bf16_f32 v16, v16, v16",
  "s_lshl_b32 s33, s26, 7", "s_add_u32 s33, s33, 1024", "v_lshlrev_b32 v3, 1, v0", "v_add_u32 v3, s33, v3", "ds_write_b16 v3, v16",
  "v_lshlrev_b32 v3, 1, v1", "v_add_u32 v3, s33, v3", "s_waitcnt lgkmcnt(0)")
for n in range(7): e(f"ds_read_u16 v{24+n}, v3 offset:{16*n}")
for c in range(8): e(f"v_mov_b32 v{40+c}, 0")
e("s_waitcnt lgkmcnt(0)")
for n in range(7): e(f"v_lshlrev_b32 v{32+n}, 16, v{24+n}")
for n in range(7):
    for c in range(4):
        w = 64 + 4*n + c
        e(f"v_dot2_f32_bf16 v{40+2*c}, v{w}, v{24+n}, v{40+2*c}", f"v_dot2_f32_bf16 v{41+2*c}, v{w}, v{32+n}, v{41+2*c}")
e("s_nop 2")
for c in range(4): e(f"v_permlane32_swap_b32 v{40+c}, v{44+c}")
e("s_nop 0")
for c in range(4): e(f"v_add_f32 v{40+c}, v{40+c}, v{44+c}")
e("s_nop 1")
for c in range(2): e(f"v_permlane16_swap_b32 v{40+c}, v{42+c}")
e("s_nop 0")
for c in range(2): e(f"v_add_f32 v{40+c}, v{40+c}, v{42+c}")
e("s_nop 1")
for c in range(2): e(f"v_add_f32_dpp v{40+c}, v{40+c}, v{40+c} row_ror:8 row_mask:0xf bank_mask:0xf")
e("v_lshlrev_b32 v1, 3, v0", "s_lshl_b32 s33, s26, 9", "s_add_u32 s33, s33, 2048", "v_add_u32 v2, s33, v1",
  "ds_write_b64 v2, v[40:41]", "s_waitcnt lgkmcnt(0)", "s_barrier", "s_cmp_lg_u32 s26, 0", "s_cbranch_scc1 L_o_end")
for q in range(1, 4): e(f"ds_read_b64 v[{40+2*q}:{41+2*q}], v2 offset:{q*512}")
e("s_waitcnt lgkmcnt(0)")
for q in range(1, 4):
    for c in range(2): e(f"v_add_f32 v{40+c}, v{40+c}, v{40+2*q+c}")
e("v_and_b32 v1, 7, v0", "v_lshlrev_b32 v1, 5, v1", "v_lshrrev_b32 v2, 5, v0", "v_lshlrev_b32 v2, 4, v2", "v_add_u32 v1, v1, v2",
  "v_bfe_u32 v2, v0, 4, 1", "v_lshlrev_b32 v2, 3, v2", "v_add_u32 v1, v1, v2",
  "s_lshl_b32 s31, s31, 12", "s_lshl_b32 s30, s30, 8", "s_add_u32 s30, s30, s31", f"s_add_u32 s30, s30, {hex(WS_YP)}",
  "s_mov_b32 exec_lo, 0x00ff00ff", "s_mov_b32 exec_hi, 0x00ff00ff",
  "buffer_store_dwordx2 v[40:41], v1, s[16:19], s30 offen")
a.lab("L_o_end"); e("s_endpgm")

ST2 = 24576; NS2 = 6
a.kernel_begin("out_kernel")
e("s_cmp_ge_u32 s2, 256", "s_cbranch_scc1 L_out_end")
e("s_load_dwordx2 s[4:5], s[0:1], 0", "s_load_dwordx2 s[6:7], s[0:1], 16", "s_load_dwordx2 s[28:29], s[0:1], 80", "s_load_dwordx2 s[40:41], s[0:1], 64")
e("s_and_b32 s20, s2, 7", "s_lshr_b32 s21, s2, 3", "s_lshr_b32 s22, s20, 1", "s_lshl_b32 s22, s22, 2", "s_and_b32 s23, s21, 3", "s_add_u32 s22, s22, s23",
  "s_and_b32 s23, s20, 1", "s_lshl_b32 s23, s23, 3", "s_lshr_b32 s24, s21, 2", "s_add_u32 s23, s23, s24")
wave_lane()
e("s_waitcnt lgkmcnt(0)")
a.srd_off(8, 28, WS_O, 0x400000); a.srd(12, 6, 0x200000); a.srd(16, 28, WS_SIZE); a.srd(44, 4, 0x400000); a.srd(48, 40, 0x400000)
e("s_cmp_ge_u32 s25, 4", "s_cbranch_scc1 L_out_loader")
e("s_lshr_b32 s26, s25, 1", "s_and_b32 s27, s25, 1")
e("s_lshl_b32 s30, s25, 3", "v_lshrrev_b32 v1, 3, v0", "v_add_u32 v61, s30, v1",
  "s_lshl_b32 s30, s22, 7", "v_add_u32 v1, s30, v61", "v_lshlrev_b32 v1, 11, v1", "v_and_b32 v2, 7, v0", "v_lshlrev_b32 v2, 4, v2",
  "v_add_u32 v1, v1, v2", "s_lshl_b32 s30, s23, 7", "v_add_u32 v60, s30, v1",
  "v_mul_u32_u24 v62, 144, v61", "v_add_u32 v62, v62, v2")
XR = 176; XNR = 192
for p in range(4):
    e(f"s_mov_b32 s30, {p*65536}", f"buffer_load_dwordx4 v[{XR+4*p}:{XR+4*p+3}], v60, s[44:47], s30 offen",
      f"buffer_load_dwordx4 v[{XNR+4*p}:{XNR+4*p+3}], v60, s[16:19], s30 offen")
e("s_lshl_b32 s30, s26, 13")
a_addr(4, 30)
for kk in range(1, 4): e(f"v_xor_b32 v{4+kk}, {kk<<5}, v4")
for kk in range(4): e(f"v_add_u32 v{8+kk}, {2*ST2}, v{4+kk}", f"v_add_u32 v{12+kk}, {4*ST2}, v{4+kk}")
b_addr(16, 27)
e("v_add_u32 v16, 16384, v16", f"v_add_u32 v17, {2*ST2}, v16", f"v_add_u32 v18, {4*ST2}, v16")
AC2 = 20
for r in range(32): e(f"v_mov_b32 v{AC2+r}, 0")
F2 = [64, 112]
def reads2(s, st):
    f = F2[st]; L = []
    off = (s & 1) * ST2
    for kk in range(4):
        g = f + 12*kk
        L += [f"ds_read_b128 v[{g}:{g+3}], v{4+4*(s>>1)+kk} offset:{off}",
              f"ds_read_b64_tr_b16 v[{g+8}:{g+9}], v{16+(s>>1)} offset:{off+kk*2048}",
              f"ds_read_b64_tr_b16 v[{g+10}:{g+11}], v{16+(s>>1)} offset:{off+kk*2048+512}",
              f"ds_read_b128 v[{g+4}:{g+7}], v{4+4*(s>>1)+kk} offset:{off+4096}"]
    return L
def mfmas2(st):
    f = F2[st]; L = []
    for kk in range(4):
        g = f + 12*kk
        for rb in range(2):
            d = AC2 + 16*rb
            L.append(f"v_mfma_f32_32x32x16_bf16 v[{d}:{d+15}], v[{g+8}:{g+11}], v[{g+4*rb}:{g+4*rb+3}], v[{d}:{d+15}]")
    return L
e("s_barrier")
e(*reads2(0, 0))
st = 0
for t in range(16):
    e("s_waitcnt lgkmcnt(0)")
    M = mfmas2(st)
    if t < 15:
        e("s_barrier")
        R = reads2((t+1) % NS2, st ^ 1)
        for q in range(8): e(M[q], R[2*q], R[2*q+1])
    else:
        e("s_barrier")
        e(*M)
    st ^= 1
find_idx(16, 64, 39)
e("v_and_b32 v1, 31, v0", "s_lshl_b32 s30, s26, 6", "v_add_u32 v1, s30, v1", "v_mul_u32_u24 v1, 144, v1",
  "v_lshrrev_b32 v2, 5, v0", "v_lshlrev_b32 v2, 3, v2", "v_add_u32 v1, v1, v2", "s_lshl_b32 s30, s27, 6", "v_add_u32 v1, s30, v1")
for rb in range(2):
    for p in range(8): e(f"v_cvt_pk_bf16_f32 v{64+8*rb+p}, v{AC2+16*rb+2*p}, v{AC2+16*rb+2*p+1}")
    for g in range(4): e(f"ds_write_b64 v1, v[{64+8*rb+2*g}:{65+8*rb+2*g}] offset:{rb*32*144 + g*16}")
e("s_waitcnt lgkmcnt(0)", "s_barrier")
for p in range(4): e(f"ds_read_b128 v[{64+4*p}:{67+4*p}], v62 offset:{p*32*144}")
e("s_lshr_b32 s30, s39, 7", "s_cmp_eq_u32 s30, s22", "s_cbranch_scc1 L_out_sel")
def final(sel):
    e("s_waitcnt vmcnt(0) lgkmcnt(0)")
    for p in range(4):
        if sel:
            e(f"v_add_u32 v1, {32*p}, v61", "v_cmp_eq_u32 vcc, s38, v1", "v_mov_b32 v2, 0", "s_nop 0", "v_cndmask_b32 v2, v2, v3, vcc")
        for c in range(4):
            x = XR+4*p+c; xn = XNR+4*p+c; at = 64+4*p+c
            e(f"v_lshlrev_b32 v4, 16, v{x}", f"v_and_b32 v5, 0xffff0000, v{x}", f"v_lshlrev_b32 v6, 16, v{at}", f"v_and_b32 v7, 0xffff0000, v{at}",
              "v_pk_add_f32 v[4:5], v[4:5], v[6:7]", "v_cvt_pk_bf16_f32 v4, v4, v5",
              f"v_lshlrev_b32 v6, 16, v{xn}", f"v_and_b32 v7, 0xffff0000, v{xn}")
            if sel:
                e(f"v_fmac_f32 v6, v2, v{96+2*c}", f"v_fmac_f32 v7, v2, v{97+2*c}", "v_cvt_pk_bf16_f32 v6, v6, v7",
                  "v_and_b32 v7, 0xffff0000, v6", "v_lshlrev_b32 v6, 16, v6")
            e("v_and_b32 v5, 0xffff0000, v4", "v_lshlrev_b32 v4, 16, v4",
              "v_pk_add_f32 v[4:5], v[4:5], v[6:7]", f"v_cvt_pk_bf16_f32 v{at}, v4, v5")
        e(f"s_mov_b32 s30, {p*65536}", f"buffer_store_dwordx4 v[{64+4*p}:{67+4*p}], v60, s[48:51], s30 offen")
    e("s_endpgm")
final(False)
a.lab("L_out_sel")
e("s_and_b32 s38, s39, 127", "v_and_b32 v1, 7, v0", "v_lshlrev_b32 v1, 5, v1", "s_lshl_b32 s30, s23, 8", f"s_add_u32 s30, s30, {hex(WS_YP)}",
  "s_lshl_b32 s31, s39, 2", f"s_add_u32 s31, s31, {hex(WS_R)}", "v_mov_b32 v2, 0", "buffer_load_dword v3, v2, s[16:19], s31 offen")
for c in range(8): e(f"v_mov_b32 v{96+c}, 0")
for s in range(16):
    e(f"buffer_load_dwordx4 v[104:107], v1, s[16:19], s30 offen", f"buffer_load_dwordx4 v[108:111], v1, s[16:19], s30 offen offset:16", "s_add_u32 s30, s30, 4096", "s_waitcnt vmcnt(0)")
    for c in range(8): e(f"v_add_f32 v{96+c}, v{96+c}, v{104+c}")
bf16r(3)
e(f"v_mul_f32 v3, {hex(LOG2E ^ 0x80000000)}, v3", "v_exp_f32 v3, v3", "s_nop 0", "v_add_f32 v3, 1.0, v3", "v_rcp_f32 v3, v3", "s_nop 0")
bf16r(3)
for c in range(8):
    bf16r(96+c); e(f"v_mul_f32 v{96+c}, v{96+c}, v3"); bf16r(96+c)
e("v_mov_b32 v3, 1.0")
final(True)
a.lab("L_out_loader")
e("s_sub_u32 s26, s25, 4")
a_voff(22); b_voff(2048, 23)
e("v_add_u32 v9, 16384, v8")
e("s_lshl_b32 s32, s26, 12", "s_lshl_b32 s33, s26, 11", "s_add_u32 s33, s33, 16384", "s_mov_b32 s34, 0", "s_mov_b32 s35, 0", "s_mov_b32 s36, 0")
def issue2():
    e("s_add_u32 s37, s36, s32", "s_add_u32 s38, s36, s33")
    for q in range(4): e(f"s_add_u32 m0, s37, {q*1024}", "s_nop 0", f"buffer_load_dwordx4 v{4+q}, s[8:11], s34 offen lds")
    for p in range(2): e(f"s_add_u32 m0, s38, {p*1024}", "s_nop 0", f"buffer_load_dwordx4 v{8+p}, s[12:15], s35 offen lds")
    e("s_add_u32 s34, s34, 128", "s_add_u32 s35, s35, 131072", f"s_add_u32 s36, s36, {ST2}", f"s_cmp_eq_u32 s36, {NS2*ST2}", "s_cselect_b32 s36, 0, s36")
issue2(); issue2()
e("s_waitcnt vmcnt(6)", "s_barrier")
for _ in range(4): issue2()
e("s_mov_b32 s31, 1")
a.lab("L_out_lloop")
e("s_waitcnt vmcnt(24)", "s_barrier")
issue2()
e("s_add_u32 s31, s31, 1", "s_cmp_lt_u32 s31, 11", "s_cbranch_scc1 L_out_lloop")
for n in (24, 18, 12, 6, 0): e(f"s_waitcnt vmcnt({n})", "s_barrier")
e("s_barrier")
a.lab("L_out_end"); e("s_endpgm")
if EXTRA:
    a.kernel_begin("nop_kernel"); e("s_endpgm")
a.raw('.section .rodata,"a"\n.p2align 6')
a.raw(kd("ln_kernel", 48)); a.raw(".p2align 6"); a.raw(kd("qkv_kernel", 256)); a.raw(".p2align 6"); a.raw(kd("o_kernel", 192)); a.raw(".p2align 6"); a.raw(kd("out_kernel", 208))
if EXTRA: a.raw(".p2align 6"); a.raw(kd("nop_kernel", 8))
sys.stdout.write(a.text())
```

```python
import sys, os
from lib import *
def P(n, d): return int(os.environ.get(n, d))
STAMP = P("STAMP", 0)
SA = P("SA", 4)
SB = P("SB", 8)
SE = P("SE", 4)
HOT = P("HOT", 1)
WNT = os.environ.get("WNT", "nt")
SPIN = 1 << 17
OFL = os.environ.get("OFL", "sc1")
WS_OF, WS_KVP, WS_ZP, WS_ST, WS_CSP = 0x0, 0x400000, 0x500000, 0x510000, 0x520000
WS_GU, WS_YP = 0x560000, 0x580000
WS_E1T, WS_KF, WS_OFL, WS_GUF, WS_YF, WS_EP = 0x5A0000, 0x5A1000, 0x5A3000, 0x5A5000, 0x5A6000, 0x5A8000
WS_SIZE = 0x10000000
LOG2E, EPS6, EPS5 = 0x3FB8AA3B, 0x358637BD, 0x3727C5AC
STAGE = 40960
S = 131072
L_INV, L_NB, L_CS, L_KEY, L_FLG, L_MISC, L_ST2, L_HS, L_UPD = S, S+512, S+1024, S+1792, S+1856, S+1824, S+2048, S+3072, S
L_XS, L_EX1, L_EX2, L_CST = S+4096, S+4096, S+16384, S+16384
a = Asm(); e = a.e
K = NAME + "_kernel"
a.raw("; @launch grid=(256,1,1) block=(512,1,1) lds=163840")
a.raw('.amdgcn_target "amdgcn-amd-amdhsa--gfx950"\n.text')
a.kernel_begin(K)
STK = os.environ.get("STK", "b0,g1end,kvpub,kvpoll,opub,y1,g2end").split(",")
def stamp(n):
    if not STAMP: return
    if n == 0: e("s_memtime s[86:87]" if P("CYC", 0) else "s_memrealtime s[86:87]")
    elif n in STK:
        k = STK.index(n) + 1
        e(f"{'s_memtime' if P('CYC', 0) else 's_memrealtime'} s[{86+2*k}:{87+2*k}]")
def bf16r(v): e(f"v_cvt_pk_bf16_f32 v{v}, v{v}, v{v}", f"v_and_b32 v{v}, 0xffff0000, v{v}")
def sigmoid(v): e(f"v_mul_f32 v{v}, {hex(LOG2E ^ 0x80000000)}, v{v}", f"v_exp_f32 v{v}, v{v}", "s_nop 0", f"v_add_f32 v{v}, 1.0, v{v}", f"v_rcp_f32 v{v}, v{v}", "s_nop 0")
def poll(vdst, voff, soff, mask_lo, mask_hi=0, sleep=1):
    lp, ld = a.newlab("LP"), a.newlab("LD")
    e(f"s_mov_b32 exec_lo, {hex(mask_lo)}", f"s_mov_b32 exec_hi, {hex(mask_hi)}", f"s_mov_b32 s39, {SPIN}")
    a.lab(lp)
    e(f"buffer_load_dword v{vdst}, v{voff}, s[16:19], s{soff} offen sc1", "s_waitcnt vmcnt(0)",
      f"v_cmp_ne_u32 vcc, s52, v{vdst}", f"s_cbranch_vccz {ld}", f"s_sleep {sleep}",
      "s_sub_u32 s39, s39, 1", f"s_cbranch_scc0 {lp}")
    a.lab(ld)
    e("s_mov_b64 exec, -1")
def lds_wait(vt, vaddr, off, sleep=0):
    lp, ld = a.newlab("LW"), a.newlab("LE")
    e(f"s_mov_b32 s39, {SPIN*8}")
    a.lab(lp)
    e(f"ds_read_b32 v{vt}, v{vaddr} offset:{off}", "s_waitcnt lgkmcnt(0)", f"v_cmp_eq_u32 vcc, 0, v{vt}", f"s_cbranch_vccz {ld}")
    if sleep: e(f"s_sleep {sleep}")
    e("s_sub_u32 s39, s39, 1", f"s_cbranch_scc0 {lp}")
    a.lab(ld)

stamp(0)
e("s_cmp_ge_u32 s2, 256", "s_cbranch_scc1 L_end")
e("s_load_dwordx4 s[4:7], s[0:1], 0", "s_load_dwordx8 s[72:79], s[0:1], 32", "s_load_dwordx2 s[80:81], s[0:1], 64",
  "s_load_dwordx2 s[82:83], s[0:1], 80", "s_load_dwordx2 s[84:85], s[0:1], 16")
e("s_and_b32 s20, s2, 7", "s_lshr_b32 s21, s2, 3", "s_and_b32 s22, s20, 1", "s_lshl_b32 s22, s22, 3",
  "s_and_b32 s23, s21, 7", "s_add_u32 s22, s22, s23",
  "s_lshr_b32 s23, s20, 1", "s_lshl_b32 s23, s23, 2", "s_lshr_b32 s24, s21, 3", "s_add_u32 s23, s23, s24",
  "s_lshr_b32 s28, s20, 1", "s_lshl_b32 s28, s28, 2", "s_and_b32 s24, s21, 3", "s_add_u32 s28, s28, s24",
  "s_and_b32 s29, s20, 1", "s_lshl_b32 s29, s29, 3", "s_lshr_b32 s24, s21, 2", "s_add_u32 s29, s29, s24")
e("v_lshrrev_b32 v1, 6, v0", "v_and_b32 v0, 63, v0", "v_lshlrev_b32 v2, 4, v0", "v_readfirstlane_b32 s25, v1")
e("s_waitcnt lgkmcnt(0)")
e(f"s_mov_b32 s30, {hex(WS_EP)}", "s_load_dword s52, s[82:83], s30")
a.srd(8, 4, 0x400000); a.srd(12, 6, 0x600000); a.srd(16, 82, WS_SIZE)
e("s_cmp_ge_u32 s25, 6", "s_cbranch_scc1 L_service", "s_cmp_ge_u32 s25, 4", "s_cbranch_scc1 L_loader")

if P("PRIO", 1): e("s_setprio 2")
a.srd(40, 72, 2048)
e("s_lshr_b32 s26, s25, 1", "s_and_b32 s27, s25, 1")
e("s_lshl_b32 s30, s22, 7", "s_lshl_b32 s31, s23, 3", "s_add_u32 s30, s30, s31", "s_lshl_b32 s31, s25, 1", "s_add_u32 s33, s30, s31",
  "s_lshl_b32 s30, s33, 11")
for q in range(4): e(f"buffer_load_dwordx4 v[{64+4*q}:{67+4*q}], v2, s[8:11], s30 offen offset:{q*1024}")
e("buffer_load_dwordx4 v[112:115], v2, s[40:43], 0 offen", "buffer_load_dwordx4 v[116:119], v2, s[40:43], 0 offen offset:1024")
e("v_cmp_le_u32 vcc, 24, v0", "v_mov_b32 v3, 0", "v_mov_b32 v4, 5760", "v_cndmask_b32 v3, v3, v4, vcc", "v_add_u32 v3, v3, v2",
  "v_cmp_le_u32 vcc, 48, v0", "v_mov_b32 v4, 0x7ff00000", "s_lshl_b32 s30, s22, 6", "s_lshl_b32 s31, s25, 4", "v_cndmask_b32 v3, v3, v4, vcc",
  "s_add_u32 s30, s30, s31", "s_mul_i32 s30, s30, 6144", "s_mul_i32 s31, s23, 384", "s_add_u32 s30, s30, s31")
for n in range(8): e(f"buffer_load_dwordx4 v[{80+4*n}:{83+4*n}], v3, s[12:15], s30 offen", "s_add_u32 s30, s30, 12288")
NHOT = 0
if HOT:
    NHOT = 1
    e("s_mul_i32 s30, s21, 96", "s_mul_i32 s31, s25, 24", "s_add_u32 s30, s30, s31", "v_add_u32 v1, s30, v0", "v_lshlrev_b32 v1, 11, v1",
      "v_cmp_gt_u32 vcc, 24, v0", "s_lshr_b32 s31, s20, 1", "s_lshl_b32 s31, s31, 9", "s_add_u32 s31, s31, 384", "v_cndmask_b32 v1, v4, v1, vcc",
      "s_bitcmp1_b32 s20, 1", "s_cselect_b32 s31, 0x600000, s31",
      "buffer_load_dword v63, v1, s[12:15], s31 offen")
e("s_lshl_b32 s30, s26, 13",
  "v_and_b32 v1, 15, v0", "v_lshrrev_b32 v5, 4, v0", "v_lshrrev_b32 v3, 1, v1", "v_xor_b32 v3, v3, v5",
  "v_lshlrev_b32 v3, 4, v3", "v_lshlrev_b32 v1, 7, v1", "v_add_u32 v1, v1, v3", "v_add_u32 v4, s30, v1",
  "v_xor_b32 v5, 64, v4", f"v_add_u32 v8, {2*STAGE}, v4", f"v_add_u32 v9, {2*STAGE}, v5")
e("v_lshrrev_b32 v1, 4, v0", "v_lshlrev_b32 v1, 10, v1", "v_bfe_u32 v6, v0, 2, 2", "v_lshlrev_b32 v3, 7, v6", "v_add_u32 v1, v1, v3",
  "v_lshrrev_b32 v6, 1, v6", "v_xor_b32 v6, s27, v6", "v_lshlrev_b32 v6, 1, v6", "v_bfe_u32 v3, v0, 4, 1", "v_or_b32 v6, v6, v3",
  "v_lshlrev_b32 v6, 5, v6", "v_add_u32 v1, v1, v6", "v_and_b32 v6, 3, v0", "v_lshlrev_b32 v6, 3, v6", "v_add_u32 v10, v1, v6")
for s in (2, 1, 0): e(f"v_add_u32 v{10+s}, {s*STAGE+16384}, v10")
for s in (2, 1, 0): e(f"v_xor_b32 v{13+s}, 32, v{10+s}")
e(f"s_waitcnt vmcnt({10+NHOT})")
for rw in range(2):
    for i in range(8): e(f"v_lshlrev_b32 v{16+16*rw+2*i}, 16, v{64+8*rw+i}", f"v_and_b32 v{17+16*rw+2*i}, 0xffff0000, v{64+8*rw+i}")
e("v_pk_add_f32 v[48:49], v[16:17], v[18:19]", "v_pk_add_f32 v[50:51], v[32:33], v[34:35]")
for i in range(2, 8): e(f"v_pk_add_f32 v[48:49], v[48:49], v[{16+2*i}:{17+2*i}]", f"v_pk_add_f32 v[50:51], v[50:51], v[{32+2*i}:{33+2*i}]")
e("v_add_f32 v48, v48, v49", "v_add_f32 v50, v50, v51")
a.wave_allreduce([48, 50], [49, 51])
e("v_mul_f32 v48, 0xba800000, v48", "v_mul_f32 v50, 0xba800000, v50")
e("v_mov_b32 v52, 0", "v_mov_b32 v53, 0", "v_mov_b32 v54, 0", "v_mov_b32 v55, 0")
SH = "op_sel_hi:[1,0]"
for i in range(8):
    e(f"v_pk_add_f32 v[56:57], v[{16+2*i}:{17+2*i}], v[48:49] {SH}", f"v_pk_add_f32 v[58:59], v[{32+2*i}:{33+2*i}], v[50:51] {SH}",
      "v_pk_fma_f32 v[52:53], v[56:57], v[56:57], v[52:53]", "v_pk_fma_f32 v[54:55], v[58:59], v[58:59], v[54:55]")
e("v_add_f32 v52, v52, v53", "v_add_f32 v54, v54, v55")
a.wave_allreduce([52, 54], [53, 55])
e("v_mul_f32 v52, 0x3a800000, v52", "v_mul_f32 v54, 0x3a800000, v54")
for v in (48, 50, 52, 54): bf16r(v)
e(f"v_add_f32 v52, {hex(EPS5)}, v52", f"v_add_f32 v54, {hex(EPS5)}, v54"); bf16r(52); bf16r(54)
e("v_sqrt_f32 v52, v52", "v_sqrt_f32 v54, v54", "s_nop 0"); bf16r(52); bf16r(54)
e("v_rcp_f32 v52, v52", "v_rcp_f32 v54, v54")
for rw in range(2):
    b = 16 + 16*rw
    for i in range(8): e(f"v_pk_add_f32 v[{b+2*i}:{b+2*i+1}], v[{b+2*i}:{b+2*i+1}], v[{48+2*rw}:{49+2*rw}] {SH}")
    for i in range(8): e(f"v_cvt_pk_bf16_f32 v{64+8*rw+i}, v{b+2*i}, v{b+2*i+1}")
    for i in range(8): e(f"v_lshlrev_b32 v{b+2*i}, 16, v{64+8*rw+i}", f"v_and_b32 v{b+2*i+1}, 0xffff0000, v{64+8*rw+i}")
    for i in range(8): e(f"v_pk_mul_f32 v[{b+2*i}:{b+2*i+1}], v[{b+2*i}:{b+2*i+1}], v[{52+2*rw}:{53+2*rw}] {SH}")
    for i in range(8): e(f"v_cvt_pk_bf16_f32 v{64+8*rw+i}, v{b+2*i}, v{b+2*i+1}")
e("v_mov_b32 v49, 0", "v_mov_b32 v51, 0", f"s_waitcnt vmcnt({8+NHOT})")
for i in range(8): e(f"v_dot2_f32_bf16 v49, v{64+i}, v{112+i}, v49", f"v_dot2_f32_bf16 v51, v{72+i}, v{112+i}, v51")
e("s_nop 1")
a.wave_allreduce([49, 51], [53, 55])
e("v_cmp_eq_u32 vcc, 1, v0", "v_mov_b32 v59, 0", "s_lshl_b32 s30, s33, 4", f"s_add_u32 s30, s30, {hex(WS_ST)}",
  "v_cndmask_b32 v56, v48, v50, vcc", "v_cndmask_b32 v57, v52, v54, vcc", "v_cndmask_b32 v58, v49, v51, vcc",
  "v_ashrrev_i32 v60, 31, v58", "v_or_b32 v60, 0x80000000, v60", "v_xor_b32 v60, v60, v58", "v_and_b32 v60, 0xfffff800, v60",
  "s_sub_u32 s31, 2047, s33", "v_sub_u32 v61, s31, v0", "v_or_b32 v60, v60, v61",
  "s_lshl_b32 s31, s25, 3", f"s_add_u32 s31, s31, {L_KEY}", "v_lshlrev_b32 v61, 2, v0", "v_add_u32 v61, s31, v61",
  "s_mov_b64 exec, 3",
  "buffer_store_dwordx4 v[56:59], v2, s[16:19], s30 offen sc1", "ds_write_b32 v61, v60",
  "s_mov_b64 exec, -1")
e("v_mov_b32 v60, 0x3f80", "v_mov_b32 v61, 0x3f800000")
for c in range(8): e(f"v_mov_b32 v{16+c}, 0")
for n in range(8):
    e(f"s_waitcnt vmcnt({7-n+NHOT+1})")
    for c in range(4): e(f"v_dot2_f32_bf16 v{16+2*c}, v{80+4*n+c}, v60, v{16+2*c}", f"v_dot2_f32_bf16 v{17+2*c}, v{80+4*n+c}, v61, v{17+2*c}")
e("s_mul_i32 s30, s25, 1536", f"s_add_u32 s30, s30, {L_CST}", "v_lshlrev_b32 v1, 5, v0", "v_add_u32 v1, s30, v1",
  "s_mov_b32 exec_hi, 0xffff", "ds_write_b128 v1, v[16:19]", "ds_write_b128 v1, v[20:23] offset:16", "s_mov_b64 exec, -1")
ACC = 64
FR = [168, 208]
def reads(s, k2, st):
    f = FR[st]; ab = 4 + k2 if s < 2 else 8 + k2; ao = (s & 1) * STAGE
    def rb(i): return f"ds_read_b128 v[{f+4*i}:{f+4*i+3}], v{ab} offset:{ao + i*2048}"
    def rt(c):
        base = 10 + s if (c & 1) == 0 else 13 + s
        o = (c >> 1) * 8192 + k2 * 4096
        return [f"ds_read_b64_tr_b16 v[{f+16+4*c}:{f+17+4*c}], v{base} offset:{o}", f"ds_read_b64_tr_b16 v[{f+18+4*c}:{f+19+4*c}], v{base} offset:{o+512}"]
    return [rb(0)] + rt(0) + [rb(1)] + rt(1) + [rb(2)] + rt(2) + [rb(3)] + rt(3) + rt(4) + rt(5)
def mfmas(st, zero=False):
    f = FR[st]; L = []
    for c in range(6):
        for r in range(4):
            d = ACC + (c*4 + r)*4
            A = f"v[{f+4*r}:{f+4*r+3}]"; B = f"v[{f+16+4*c}:{f+19+4*c}]"
            if c < 2: A, B = B, A
            L.append(f"v_mfma_f32_16x16x32_bf16 v[{d}:{d+3}], {A}, {B}, " + ("0" if zero else f"v[{d}:{d+3}]"))
    return L
st = 0
def step(s, snext, first=False):
    global st
    for k2 in range(2):
        e("s_waitcnt vmcnt(0) lgkmcnt(0)" if (first and k2 == 1) else "s_waitcnt lgkmcnt(0)")
        if k2 == 1:
            e("s_barrier"); R = reads(snext, 0, st ^ 1)
        else: R = reads(s, 1, st ^ 1)
        M = mfmas(st, first and k2 == 0)
        for q in range(24):
            e(M[q])
            if q < 16: e(R[q])
        st ^= 1
e("s_waitcnt lgkmcnt(0)", "s_barrier")
stamp("b0")
e(*reads(0, 0, 0))
step(0, 1, True)
e("s_mov_b32 s31, 0")
a.lab("L_cloop")
step(1, 2); step(2, 0); step(0, 1)
e("s_add_u32 s31, s31, 1", "s_cmp_lt_u32 s31, 5", "s_cbranch_scc1 L_cloop")
stamp("g1end")
e("s_waitcnt lgkmcnt(0)",
  "v_lshrrev_b32 v1, 4, v0", "v_lshlrev_b32 v1, 4, v1", "s_lshl_b32 s30, s26, 8", f"s_add_u32 s30, s30, {L_INV}", "v_add_u32 v3, s30, v1",
  "v_and_b32 v4, 15, v0", "v_lshlrev_b32 v4, 2, v4", "s_lshl_b32 s31, s27, 7", f"s_add_u32 s31, s31, {L_CS}", "v_add_u32 v5, s31, v4",
  "v_add_u32 v6, s30, v4", "v_add_u32 v7, s31, v1")
for r in range(4): e(f"ds_read_b128 v[{16+4*r}:{19+4*r}], v3 offset:{64*r}", f"ds_read_b128 v[{32+4*r}:{35+4*r}], v3 offset:{512+64*r}")
EV = [48, 50, 60, 62]
for q in range(4): e(f"ds_read_b32 v{EV[q]}, v5 offset:{256*(1+(q>>1)) + 64*(q&1)}")
e(f"s_mov_b32 s34, {hex(LOG2E)}", f"s_mov_b32 s35, {hex(LOG2E)}", f"s_mov_b32 s36, {hex(EPS6)}")
PK, VB, KV, Z, ON = 168, 184, 200, 216, 224
for q in range(4): e(f"v_mov_b32 v{ON+q}, 0x3f803f80")
e("s_waitcnt lgkmcnt(0)", "s_add_u32 s52, s52, 1")
def sel1(q): return (f"v[{EV[q]}:{EV[q]+1}]", SH)
def phi2(r, dst, t):
    e(f"v_pk_mul_f32 v[{t}:{t+1}], v[{r}:{r+1}], s[34:35]",
      f"v_exp_f32_e64 v{t}, v{t} clamp", f"v_exp_f32_e64 v{t+1}, v{t+1} clamp",
      f"v_max_f32 v{r}, s36, v{r}", f"v_max_f32 v{r+1}, s36, v{r+1}",
      f"v_pk_add_f32 v[{t}:{t+1}], v[{t}:{t+1}], v[{r}:{r+1}]",
      f"v_cvt_pk_bf16_f32 v{dst}, v{t}, v{t+1}")
for rp in range(2):
    for c in range(2, 6):
        for r in (2*rp, 2*rp+1):
            d = ACC + (c*4+r)*4; cs, sl = sel1(c-2)
            e(f"v_pk_mul_f32 v[52:53], v[{32+4*r}:{33+4*r}], {cs} {sl}", f"v_pk_mul_f32 v[54:55], v[{34+4*r}:{35+4*r}], {cs} {sl}",
              f"v_pk_fma_f32 v[{d}:{d+1}], v[{d}:{d+1}], v[{16+4*r}:{17+4*r}], v[52:53]", f"v_pk_fma_f32 v[{d+2}:{d+3}], v[{d+2}:{d+3}], v[{18+4*r}:{19+4*r}], v[54:55]")
            if c < 4:
                o = PK + (c-2)*8 + rp*4 + (r & 1)*2
                phi2(d, o, 56); phi2(d+2, o+1, 58)
            else:
                o = VB + (c-4)*8 + rp*4 + (r & 1)*2
                e(f"v_cvt_pk_bf16_f32 v{o}, v{d}, v{d+1}", f"v_cvt_pk_bf16_f32 v{o+1}, v{d+2}, v{d+3}")
    e("s_nop 1")
    for db in range(2):
        A = f"v[{PK+8*db+4*rp}:{PK+8*db+4*rp+3}]"
        for eb in range(2):
            d = KV + 8*eb + 4*db
            e(f"v_mfma_f32_16x16x32_bf16 v[{d}:{d+3}], {A}, v[{VB+8*eb+4*rp}:{VB+8*eb+4*rp+3}], " + ("0" if rp == 0 else f"v[{d}:{d+3}]"))
        d = Z + 4*db
        e(f"v_mfma_f32_16x16x32_bf16 v[{d}:{d+3}], {A}, v[{ON}:{ON+3}], " + ("0" if rp == 0 else f"v[{d}:{d+3}]"))
stamp("kvmfma")
e("v_mov_b32 v10, 1", "s_lshl_b32 s38, s23, 1", "s_add_u32 s38, s38, s27",
  f"v_mov_b32 v4, {L_FLG}", "v_mov_b32 v5, 1", "s_lshl_b32 s31, s25, 2", "v_add_u32 v9, s31, v4", "v_xor_b32 v8, 8, v9",
  "s_lshl_b32 s30, s38, 4", "s_add_u32 s30, s30, s22", "s_lshl_b32 s31, s30, 11", "s_lshl_b32 s32, s26, 10", "s_add_u32 s31, s31, s32", f"s_add_u32 s31, s31, {hex(WS_KVP)}",
  "s_lshl_b32 s30, s30, 7", f"s_add_u32 s30, s30, {hex(WS_ZP)}",
  "s_lshl_b32 s32, s38, 7", "s_lshl_b32 s33, s22, 3", "s_add_u32 s32, s32, s33", "s_lshl_b32 s33, s26, 2", "s_add_u32 s32, s32, s33", f"s_add_u32 s32, s32, {hex(WS_KF)}",
  "s_cmp_eq_u32 s26, 0", "s_cbranch_scc1 L_wr0")
e("s_lshl_b32 s33, s27, 12", f"s_add_u32 s33, s33, {L_EX1+4096}", "v_add_u32 v3, s33, v2", "s_lshl_b32 s33, s27, 11", f"s_add_u32 s33, s33, {L_EX1}", "v_add_u32 v1, s33, v2",
  f"ds_write_b128 v3, v[{KV}:{KV+3}]", f"ds_write_b128 v3, v[{KV+4}:{KV+7}] offset:1024", f"ds_write_b128 v3, v[{Z}:{Z+3}] offset:2048", f"ds_write_b128 v3, v[{Z+4}:{Z+7}] offset:3072",
  "ds_write_b32 v9, v5")
lds_wait(5, 8, 0)
e("ds_read_b128 v[228:231], v1", "ds_read_b128 v[232:235], v1 offset:1024", "s_waitcnt lgkmcnt(0)")
for q in range(4): e(f"v_pk_add_f32 v[{KV+8+2*q}:{KV+9+2*q}], v[{KV+8+2*q}:{KV+9+2*q}], v[{228+2*q}:{229+2*q}]")
for p in range(4): e(f"v_cvt_pk_bf16_f32 v{PK+p}, v{KV+8+2*p}, v{KV+9+2*p}")
e(f"buffer_store_dwordx4 v[{PK}:{PK+3}], v2, s[16:19], s31 offen sc1", "s_branch L_kvflag")
a.lab("L_wr0")
e("s_lshl_b32 s33, s27, 11", f"s_add_u32 s33, s33, {L_EX1}", "v_add_u32 v3, s33, v2", "s_lshl_b32 s33, s27, 12", f"s_add_u32 s33, s33, {L_EX1+4096}", "v_add_u32 v1, s33, v2",
  f"ds_write_b128 v3, v[{KV+8}:{KV+11}]", f"ds_write_b128 v3, v[{KV+12}:{KV+15}] offset:1024", "ds_write_b32 v9, v5")
lds_wait(5, 8, 0)
for q in range(4): e(f"ds_read_b128 v[{228+4*q}:{231+4*q}], v1 offset:{q*1024}")
e("v_lshlrev_b32 v5, 1, v0", "s_waitcnt lgkmcnt(2)")
for q in range(4): e(f"v_pk_add_f32 v[{KV+2*q}:{KV+1+2*q}], v[{KV+2*q}:{KV+1+2*q}], v[{228+2*q}:{229+2*q}]")
for p in range(4): e(f"v_cvt_pk_bf16_f32 v{PK+p}, v{KV+2*p}, v{KV+1+2*p}")
e(f"buffer_store_dwordx4 v[{PK}:{PK+3}], v2, s[16:19], s31 offen sc1", "s_waitcnt lgkmcnt(0)")
for q in range(4): e(f"v_pk_add_f32 v[{Z+2*q}:{Z+1+2*q}], v[{Z+2*q}:{Z+1+2*q}], v[{236+2*q}:{237+2*q}]")
e("s_mov_b32 exec_lo, 0x00010001", "s_mov_b32 exec_hi, 0x00010001",
  f"buffer_store_dwordx4 v[{Z}:{Z+3}], v5, s[16:19], s30 offen sc1", f"buffer_store_dwordx4 v[{Z+4}:{Z+7}], v5, s[16:19], s30 offen offset:16 sc1", "s_mov_b64 exec, -1")
a.lab("L_kvflag")
stamp("kvex")
for r in range(4): e(f"ds_read_b32 v{16+2*r}, v6 offset:{64*r}", f"ds_read_b32 v{EV[r]}, v6 offset:{512+64*r}")
for c in range(2): e(f"ds_read_b128 v[{24+4*c}:{27+4*c}], v7 offset:{64*c}")
QF = P("QF", 1)
PQ = 32
def qblock(r):
    inv = f"v[{16+2*r}:{17+2*r}]"; nb = f"v[{EV[r]}:{EV[r]+1}]"
    sl = SH; sl3 = "op_sel_hi:[1,0,1]"
    for c in range(2):
        d = ACC + (c*4+r)*4
        e(f"v_pk_mul_f32 v[52:53], v[{24+4*c}:{25+4*c}], {nb} {sl}", f"v_pk_mul_f32 v[54:55], v[{26+4*c}:{27+4*c}], {nb} {sl}",
          f"v_pk_fma_f32 v[{d}:{d+1}], v[{d}:{d+1}], {inv}, v[52:53] {sl3}", f"v_pk_fma_f32 v[{d+2}:{d+3}], v[{d+2}:{d+3}], {inv}, v[54:55] {sl3}")
        phi2(d, PQ+4*r+2*c, 56); phi2(d+2, PQ+4*r+2*c+1, 58)
e("s_waitcnt lgkmcnt(0)")
for r in range(QF): qblock(r)
e("v_mov_b32 v5, s52", "s_mov_b64 exec, 1", "s_waitcnt vmcnt(0)", "buffer_store_dword v5, v2, s[16:19], s32 offen sc1", "ds_write_b32 v4, v10 offset:36", "s_mov_b64 exec, -1")
stamp("kvpub")
for r in range(QF, 4): qblock(r)
stamp("qdone")
e("s_cmp_lg_u32 s25, 0", "s_cbranch_scc1 L_kvw", "v_lshlrev_b32 v5, 2, v0", "s_lshl_b32 s30, s23, 8", f"s_add_u32 s30, s30, {hex(WS_KF)}")
poll(6, 5, 30, 0xffffffff, 0xffffffff, sleep=P("SLK", 2))
e("v_mov_b32 v5, 1", "ds_write_b32 v4, v5 offset:32", "s_branch L_kvgo")
a.lab("L_kvw")
lds_wait(5, 4, 32, 1)
a.lab("L_kvgo")
stamp("kvpoll")
e("v_lshlrev_b32 v5, 5, v0", "s_lshl_b32 s30, s38, 11", f"s_add_u32 s30, s30, {hex(WS_ZP)}",
  "buffer_load_dwordx4 v[16:19], v5, s[16:19], s30 offen sc1", "buffer_load_dwordx4 v[20:23], v5, s[16:19], s30 offen offset:16 sc1",
  "s_lshl_b32 s30, s38, 15", "s_lshl_b32 s31, s26, 14", "s_add_u32 s30, s30, s31", f"s_add_u32 s30, s30, {hex(WS_KVP)}")
for p in range(8):
    e(f"s_add_u32 s31, s22, {p}", "s_and_b32 s31, s31, 7", "s_lshl_b32 s31, s31, 11", "s_add_u32 s31, s31, s30",
      f"buffer_load_dwordx4 v[{64+8*p}:{67+8*p}], v2, s[16:19], s31 offen sc1",
      f"buffer_load_dwordx4 v[{68+8*p}:{71+8*p}], v2, s[16:19], s31 offen offset:1024 sc1")
e("v_mov_b32 v60, 0x3f80", "v_mov_b32 v61, 0x3f800000")
for c in range(16): e(f"v_mov_b32 v{128+c}, 0")
e("v_lshrrev_b32 v6, 4, v0", "v_lshlrev_b32 v6, 2, v6", "s_waitcnt vmcnt(16)")
for ctrl in ("row_ror:4", "row_ror:8"):
    for c in range(8): e(f"v_add_f32_dpp v{16+c}, v{16+c}, v{16+c} {ctrl} row_mask:0xf bank_mask:0xf")
for sw in ("v_permlane16_swap_b32", "v_permlane32_swap_b32"):
    for c in range(8): e(f"v_mov_b32 v{24+c}, v{16+c}")
    for c in range(8): e(f"{sw} v{16+c}, v{24+c}")
    for c in range(8): e(f"v_add_f32 v{16+c}, v{16+c}, v{24+c}")
for p in range(4): e(f"v_cvt_pk_bf16_f32 v{16+p}, v{16+2*p}, v{17+2*p}")
for p in range(4): e(f"ds_bpermute_b32 v{24+p}, v6, v{16+p}")
for p in range(8):
    e(f"s_waitcnt vmcnt({2*(7-p)})")
    for c in range(8): e(f"v_dot2_f32_bf16 v{128+2*c}, v{64+8*p+c}, v60, v{128+2*c}", f"v_dot2_f32_bf16 v{129+2*c}, v{64+8*p+c}, v61, v{129+2*c}")
stamp("paysum")
e("s_lshl_b32 s30, s25, 12", f"s_add_u32 s30, s30, {L_EX2}", "v_add_u32 v3, s30, v2", "v_xor_b32 v7, 8192, v3", "v_mov_b32 v5, 1")
for q in range(4): e(f"ds_write_b128 v3, v[{128+4*q}:{131+4*q}] offset:{q*1024}")
e("ds_write_b32 v9, v5 offset:16")
lds_wait(5, 8, 16)
for q in range(4): e(f"ds_read_b128 v[{64+4*q}:{67+4*q}], v7 offset:{q*1024}")
e("s_lshl_b32 s30, s22, 3", "s_lshl_b32 s31, s26, 2", "s_add_u32 s30, s30, s31", "s_lshl_b32 s30, s30, 5", "s_add_u32 s30, s30, s38", "s_lshl_b32 s30, s30, 10")
for q in range(8):
    if q % 2 == 0: e(f"s_waitcnt lgkmcnt({3 - q//2})")
    e(f"v_pk_add_f32 v[{128+2*q}:{129+2*q}], v[{128+2*q}:{129+2*q}], v[{64+2*q}:{65+2*q}]")
for p in range(8): e(f"v_cvt_pk_bf16_f32 v{16+p}, v{128+2*p}, v{129+2*p}")
for r in range(4):
    n = 64 + 12*r
    e(f"v_mfma_f32_16x16x32_bf16 v[{n+8}:{n+11}], v[24:27], v[{PQ+4*r}:{PQ+4*r+3}], 0")
for r in range(4):
    n = 64 + 12*r
    e(f"v_mfma_f32_16x16x32_bf16 v[{n}:{n+3}], v[16:19], v[{PQ+4*r}:{PQ+4*r+3}], 0",
      f"v_mfma_f32_16x16x32_bf16 v[{n+4}:{n+7}], v[20:23], v[{PQ+4*r}:{PQ+4*r+3}], 0")
for r in range(4): e(f"v_add_f32 v{64+12*r+8}, s36, v{64+12*r+8}")
for r in range(4): e(f"v_rcp_f32 v{64+12*r+8}, v{64+12*r+8}")
for r in range(4):
    n = 64 + 12*r
    for q in range(4): e(f"v_pk_mul_f32 v[{n+2*q}:{n+2*q+1}], v[{n+2*q}:{n+2*q+1}], v[{n+8}:{n+9}] op_sel_hi:[1,0]")
    for q in range(4): e(f"v_cvt_pk_bf16_f32 v{128+4*r+q}, v{n+2*q}, v{n+2*q+1}")
    e(f"buffer_store_dwordx4 v[{128+4*r}:{131+4*r}], v2, s[16:19], s30 offen sc1", "s_add_u32 s30, s30, 32768")
stamp("ostore")
e("s_lshl_b32 s30, s22, 8", "s_lshl_b32 s31, s23, 4", "s_add_u32 s30, s30, s31", "s_lshl_b32 s31, s25, 2", "s_add_u32 s30, s30, s31", f"s_add_u32 s30, s30, {hex(WS_OFL)}",
  "v_mov_b32 v5, s52", "s_mov_b64 exec, 1", "s_waitcnt vmcnt(0)", "buffer_store_dword v5, v2, s[16:19], s30 offen sc1", "ds_write_b32 v4, v10 offset:40", "s_mov_b64 exec, -1")
stamp("opub")
e("s_branch L_phase2")

a.lab("L_loader")
e("s_sub_u32 s26, s25, 4")
e("s_lshl_b32 s30, s22, 7", "s_lshl_b32 s31, s26, 6", "s_add_u32 s30, s30, s31",
  "v_lshrrev_b32 v1, 3, v0", "v_add_u32 v3, s30, v1", "v_lshlrev_b32 v3, 11, v3",
  "v_and_b32 v4, 7, v0", "v_lshrrev_b32 v5, 4, v0", "v_xor_b32 v6, v4, v5", "v_lshlrev_b32 v6, 4, v6",
  "v_add_u32 v16, v3, v6", "v_xor_b32 v17, 64, v16", "v_add_u32 v17, 16384, v17")
for q in range(2, 8): e(f"v_add_u32 v{16+q}, {32768*(q>>1)}, v{16+(q&1)}")
e("s_lshl_b32 s30, s26, 5", "v_add_u32 v3, s30, v1", "v_mul_u32_u24 v3, 6144, v3",
  "v_and_b32 v6, 1, v5", "v_lshlrev_b32 v6, 2, v6", "v_xor_b32 v6, v4, v6", "v_lshlrev_b32 v6, 4, v6",
  "v_add_u32 v3, v3, v6", "s_lshl_b32 s30, s23, 7", "v_add_u32 v24, s30, v3", "v_xor_b32 v25, 32, v24", "v_add_u32 v25, 49152, v25")
for sec in range(3):
    for p in range(4):
        if sec or p >= 2: e(f"v_add_u32 v{24+sec*4+p}, {sec*2048 + (p>>1)*98304}, v{24+(p&1)}")
e("s_lshl_b32 s32, s26, 13", "s_lshl_b32 s33, s26, 12", "s_add_u32 s33, s33, 16384", "s_mov_b32 s34, 0", "s_mov_b32 s35, 0", "s_mov_b32 s36, 0")
def issue():
    e("s_add_u32 s37, s36, s32", "s_add_u32 s38, s36, s33")
    for q in range(8): e(f"s_add_u32 m0, s37, {q*1024}", "s_nop 0", f"buffer_load_dwordx4 v{16+q}, s[8:11], s34 offen lds")
    for sec in range(3):
        for p in range(4): e(f"s_add_u32 m0, s38, {sec*8192 + p*1024}", "s_nop 0", f"buffer_load_dwordx4 v{24+sec*4+p}, s[12:15], s35 offen lds")
    e("s_add_u32 s34, s34, 128", "s_add_u32 s35, s35, 393216", f"s_add_u32 s36, s36, {STAGE}", f"s_cmp_eq_u32 s36, {3*STAGE}", "s_cselect_b32 s36, 0, s36")
e("s_mov_b32 s31, 0")
a.lab("L_lloop")
e("s_cmp_lt_u32 s31, 2", "s_cbranch_scc1 L_lissue", "s_waitcnt vmcnt(20)", "s_barrier")
a.lab("L_lissue")
issue()
e("s_add_u32 s31, s31, 1", "s_cmp_lt_u32 s31, 16", "s_cbranch_scc1 L_lloop")
a.srd(40, 84, 0x200000)
e("v_lshlrev_b32 v3, 11, v1", "v_lshlrev_b32 v6, 1, v5", "v_xor_b32 v6, v4, v6", "v_lshlrev_b32 v6, 4, v6", "v_add_u32 v3, v3, v6",
  "s_lshl_b32 s30, s29, 7", "v_add_u32 v40, s30, v3", "s_and_b32 s34, s28, 3", "s_lshl_b32 s34, s34, 1", "s_mov_b32 s31, 0")
e("s_waitcnt vmcnt(20)", "s_barrier", "s_waitcnt vmcnt(0)", "s_barrier", "s_barrier")
WOT = P("WOT", 0)
if WOT:
    e(f"v_mov_b32 v41, {L_FLG}")
    lds_wait(42, 41, {1: 36, 2: 32}[WOT], 2)
stamp("wostart")
a.lab("L_woloop")
e("s_and_b32 s35, s34, 7", "s_lshl_b32 s36, s26, 3", "s_add_u32 s35, s35, s36", "s_lshl_b32 s36, s35, 13", "s_lshl_b32 s35, s35, 17")
for q in range(8): e(f"s_add_u32 m0, s36, {q*1024}", "s_nop 0", "buffer_load_dwordx4 v40, s[40:43], s35 offen lds", "s_add_u32 s35, s35, 16384")
e("s_waitcnt vmcnt(40)", "s_add_u32 s34, s34, 1", "s_add_u32 s31, s31, 1", "s_cmp_lt_u32 s31, 8", "s_cbranch_scc1 L_woloop")
e("s_waitcnt vmcnt(0) lgkmcnt(0)")
stamp("wodone")
e("s_add_u32 s52, s52, 1", "s_branch L_phase2")

a.lab("L_service")
e("s_sub_u32 s26, s25, 6")
if P("CPF", 1):
    e("s_getpc_b64 s[30:31]")
    a.lab("L_pc")
    e(f"s_sub_u32 s30, s30, L_pc-{K}", "s_subb_u32 s31, s31, 0", "s_lshl_b32 s32, s21, 1", "s_add_u32 s32, s32, s26", "s_lshl_b32 s32, s32, 9",
      "v_lshlrev_b32 v3, 7, v0", "v_add_u32 v3, s32, v3", f"v_min_u32 v3, L_end-{K}, v3", "s_mov_b64 exec, 15", "global_load_dword v245, v3, s[30:31]", "s_mov_b64 exec, -1")
e("s_cmp_eq_u32 s26, 0", "s_cselect_b32 s40, s74, s76", "s_cselect_b32 s41, s75, s77", "s_and_b32 s41, s41, 0xffff",
  "s_cmp_lt_u32 s2, 224", "s_cselect_b32 s42, 7340032, 0", "s_mov_b32 s43, 0x20000")
a.srd(44, 78, 7340032)
if P("NOMOE", 0): e("s_mov_b32 s42, 0", "s_mov_b32 s46, 0")
e("s_mul_i32 s48, s2, 1171", "s_lshr_b32 s48, s48, 16", "s_mul_i32 s49, s48, 56", "s_sub_u32 s49, s2, s49",
  "s_and_b32 s50, s2, 15", "s_lshr_b32 s51, s2, 4")
e("v_lshrrev_b32 v1, 3, v0", "v_and_b32 v3, 7, v0", "v_lshlrev_b32 v3, 4, v3",
  "v_mul_u32_u24 v16, 7168, v1", "v_add_u32 v16, v16, v3",
  "v_lshlrev_b32 v17, 11, v1", "v_add_u32 v17, v17, v3",
  "s_mul_i32 s53, s48, 1835008", "s_lshl_b32 s30, s49, 7", "s_add_u32 s53, s53, s30",
  f"v_mov_b32 v4, {L_FLG}", "v_mov_b32 v8, 0", "v_mov_b32 v9, 0", "v_mov_b32 v10, 0", "v_mov_b32 v11, 0",
  "ds_write_b128 v4, v[8:11]", "ds_write_b128 v4, v[8:11] offset:16", "ds_write_b128 v4, v[8:11] offset:32", "s_waitcnt lgkmcnt(0)", "s_add_u32 s52, s52, 1")
WG, WD, XS, AC = 60, 188, 28, 20
def burst(n0):
    for n in range(n0, n0+16): e(f"buffer_load_dwordx4 v[{WG+4*n}:{WG+4*n+3}], v16, s[40:43], s53 offen {WNT}", "s_add_u32 s53, s53, 57344")
def gemv(base, cnt):
    for c in range(8): e(f"v_mov_b32 v{AC+c}, 0")
    for n in range(cnt):
        e(f"v_lshlrev_b32 v{18+(n&1)}, 16, v{XS+n}")
        for c in range(4):
            e(f"v_dot2_f32_bf16 v{AC+2*c}, v{base+4*n+c}, v{XS+n}, v{AC+2*c}", f"v_dot2_f32_bf16 v{AC+1+2*c}, v{base+4*n+c}, v{18+(n&1)}, v{AC+1+2*c}")
    e("s_nop 2")
    for c in range(4): e(f"v_permlane32_swap_b32 v{AC+c}, v{AC+4+c}")
    e("s_nop 0")
    for c in range(4): e(f"v_add_f32 v{AC+c}, v{AC+c}, v{AC+4+c}")
    e("s_nop 1")
    for c in range(2): e(f"v_permlane16_swap_b32 v{AC+c}, v{AC+2+c}")
    e("s_nop 0")
    for c in range(2): e(f"v_add_f32 v{AC+c}, v{AC+c}, v{AC+2+c}")
    e("s_nop 1")
    for c in range(2): e(f"v_add_f32_dpp v{AC+c}, v{AC+c}, v{AC+c} row_ror:8 row_mask:0xf bank_mask:0xf")
    e("v_and_b32 v4, 7, v0", "v_lshlrev_b32 v4, 5, v4", "v_lshrrev_b32 v5, 5, v0", "v_lshlrev_b32 v5, 4, v5", "v_add_u32 v4, v4, v5",
      "v_bfe_u32 v5, v0, 4, 1", "v_lshlrev_b32 v5, 3, v5", "v_add_u32 v4, v4, v5")
def act0():
    e("s_mul_i32 s30, s26, 48", "v_add_u32 v4, s30, v0", "v_lshlrev_b32 v5, 3, v4", f"v_add_u32 v4, {L_CST}, v5")
    for q in range(8): e(f"ds_read_b64 v[{20+2*q}:{21+2*q}], v4 offset:{(q>>1)*1536 + (q&1)*768}")
    e(f"v_mov_b32 v6, {L_KEY}", "ds_read_b128 v[40:43], v6", "ds_read_b128 v[44:47], v6 offset:16",
      "s_mul_i32 s30, s22, 12288", "s_mul_i32 s31, s23, 768", "s_add_u32 s30, s30, s31", f"s_add_u32 s30, s30, {hex(WS_CSP)}", "s_waitcnt lgkmcnt(0)")
    for q in range(1, 8): e(f"v_pk_add_f32 v[20:21], v[20:21], v[{20+2*q}:{21+2*q}]")
    e("v_max3_u32 v40, v40, v41, v42", "v_max3_u32 v40, v40, v43, v44", "v_max3_u32 v40, v40, v45, v46", "v_max_u32 v40, v40, v47", "v_mov_b32 v41, s52",
      "s_mov_b32 exec_hi, 0xffff", "buffer_store_dwordx2 v[20:21], v5, s[16:19], s30 offen sc1", "s_mov_b64 exec, -1")
def act1(): e("s_waitcnt vmcnt(0)")
def act2():
    l = a.newlab()
    e("s_cmp_lg_u32 s26, 0", f"s_cbranch_scc1 {l}", "s_lshl_b32 s30, s2, 3", f"s_add_u32 s30, s30, {hex(WS_E1T)}", "s_mov_b64 exec, 1",
      "buffer_store_dwordx2 v[40:41], v2, s[16:19], s30 offen sc1", "s_mov_b64 exec, -1")
    a.lab(l)
def e1_issue():
    e("v_lshlrev_b32 v19, 5, v0", f"s_mov_b32 s54, {hex(WS_E1T)}",
      "buffer_load_dwordx4 v[40:43], v19, s[16:19], s54 offen sc1", "buffer_load_dwordx4 v[44:47], v19, s[16:19], s54 offen offset:16 sc1")
def rg(n): return WD + 4*n
def e1_check():
    lp, ld = a.newlab(), a.newlab()
    e(f"s_mov_b32 s39, {SPIN}")
    a.lab(lp)
    e("s_waitcnt vmcnt(0)", "v_xor_b32 v4, s52, v41", "v_xor_b32 v5, s52, v43", "v_xor_b32 v6, s52, v45", "v_xor_b32 v7, s52, v47",
      "v_or_b32 v4, v4, v5", "v_or3_b32 v4, v4, v6, v7", "v_cmp_ne_u32 vcc, 0, v4", f"s_cbranch_vccz {ld}",
      "buffer_load_dwordx4 v[40:43], v19, s[16:19], s54 offen sc1", "buffer_load_dwordx4 v[44:47], v19, s[16:19], s54 offen offset:16 sc1",
      "s_sub_u32 s39, s39, 1", f"s_cbranch_scc0 {lp}")
    a.lab(ld)
    e("s_waitcnt vmcnt(0)", "v_max_u32 v40, v40, v42", "v_max3_u32 v40, v40, v44, v46")
    a.wave_allreduce([40], [41], op="v_max_u32")
    e("s_nop 0", "v_readfirstlane_b32 s55, v40", "s_nop 3", "s_and_b32 s55, s55, 0x7ff", "s_sub_u32 s55, 2047, s55")
    l7, lj = a.newlab(), a.newlab()
    e("s_cmp_lg_u32 s26, 0", f"s_cbranch_scc1 {l7}")
    e("s_lshl_b32 s30, s22, 11", f"s_add_u32 s30, s30, {hex(WS_ST)}", "s_lshl_b32 s31, s28, 11", f"s_add_u32 s31, s31, {hex(WS_ST)}",
      "buffer_load_dwordx4 v[40:43], v2, s[16:19], s30 offen sc1", "buffer_load_dwordx4 v[44:47], v2, s[16:19], s30 offen offset:1024 sc1",
      "buffer_load_dwordx4 v[48:51], v2, s[16:19], s31 offen sc1", "buffer_load_dwordx4 v[52:55], v2, s[16:19], s31 offen offset:1024 sc1",
      "s_lshl_b32 s30, s55, 4", f"s_add_u32 s30, s30, {hex(WS_ST)}", "v_mov_b32 v4, 0", "buffer_load_dwordx4 v[56:59], v4, s[16:19], s30 offen sc1",
      "s_lshl_b32 s30, s55, 11", "s_lshl_b32 s31, s48, 9", "s_add_u32 s30, s30, s31", "v_lshlrev_b32 v5, 3, v0", "buffer_load_dwordx2 v[20:21], v5, s[8:11], s30 offen",
      "s_cmp_lg_u32 s2, 0", f"s_cbranch_scc1 {lj}", f"s_mov_b32 s30, {hex(WS_EP)}", "v_mov_b32 v6, s52", "s_mov_b64 exec, 1",
      "buffer_store_dword v6, v4, s[16:19], s30 offen sc1", "s_mov_b64 exec, -1", f"s_branch {lj}")
    a.lab(l7)
    e("v_lshrrev_b32 v4, 4, v0", "v_mul_u32_u24 v4, 12288, v4", "v_and_b32 v5, 15, v0", "v_lshlrev_b32 v5, 4, v5", "v_add_u32 v4, v4, v5",
      "s_lshl_b32 s30, s23, 8", f"s_add_u32 s30, s30, {hex(WS_CSP)}")
    for n in range(12):
        e(f"s_add_u32 s31, s30, {(n>>2)*4096 + (n&3)*49152}", f"buffer_load_dwordx4 v[{rg(n)}:{rg(n)+3}], v4, s[16:19], s31 offen sc1")
    a.lab(lj)
def both(f6, f7):
    l7, lj = a.newlab(), a.newlab()
    e("s_cmp_lg_u32 s26, 0", f"s_cbranch_scc1 {l7}"); f6(); e(f"s_branch {lj}"); a.lab(l7); f7(); a.lab(lj)
regs7 = [rg(4*sec)+c for sec in range(3) for c in range(4)]
def u6a():
    e("v_mul_f32 v40, v40, v41", "v_mul_f32 v44, v44, v45", "v_lshlrev_b32 v4, 2, v0", f"v_add_u32 v4, {L_INV}, v4",
      "ds_write_b32 v4, v41", "ds_write_b32 v4, v45 offset:256", "ds_write_b32 v4, v40 offset:512", "ds_write_b32 v4, v44 offset:768",
      "v_lshlrev_b32 v4, 3, v0", f"v_add_u32 v4, {L_ST2}, v4", "ds_write_b64 v4, v[48:49]", "ds_write_b64 v4, v[52:53] offset:512")
def u6b():
    e("v_lshlrev_b32 v8, 16, v20", "v_and_b32 v9, 0xffff0000, v20", "v_lshlrev_b32 v10, 16, v21", "v_and_b32 v11, 0xffff0000, v21",
      "v_add_f32 v8, v8, v56", "v_add_f32 v9, v9, v56", "v_add_f32 v10, v10, v56", "v_add_f32 v11, v11, v56",
      "v_cvt_pk_bf16_f32 v20, v8, v9", "v_cvt_pk_bf16_f32 v21, v10, v11",
      "v_lshlrev_b32 v8, 16, v20", "v_and_b32 v9, 0xffff0000, v20", "v_lshlrev_b32 v10, 16, v21", "v_and_b32 v11, 0xffff0000, v21",
      "v_mul_f32 v8, v8, v57", "v_mul_f32 v9, v9, v57", "v_mul_f32 v10, v10, v57", "v_mul_f32 v11, v11, v57",
      "v_cvt_pk_bf16_f32 v20, v8, v9", "v_cvt_pk_bf16_f32 v21, v10, v11",
      "v_and_b32 v8, 0xffff, v20", "v_lshrrev_b32 v9, 16, v20", "v_and_b32 v10, 0xffff, v21", "v_lshrrev_b32 v11, 16, v21",
      "v_and_b32 v4, 1, v0", "v_lshlrev_b32 v4, 9, v4", "v_lshrrev_b32 v5, 1, v0", "v_lshlrev_b32 v5, 2, v5", "v_add_u32 v4, v4, v5", f"v_add_u32 v4, {L_XS}, v4",
      "ds_write_b32 v4, v8", "ds_write_b32 v4, v9 offset:128", "ds_write_b32 v4, v10 offset:256", "ds_write_b32 v4, v11 offset:384")
def u6c():
    bf16r(58); sigmoid(58); bf16r(58)
    e("v_mov_b32 v59, s55", f"v_mov_b32 v4, {L_MISC}", "ds_write_b64 v4, v[58:59]")
def u7a():
    for sec in range(3):
        for n in range(1, 4):
            for c in range(4): e(f"v_add_f32 v{rg(4*sec)+c}, v{rg(4*sec)+c}, v{rg(4*sec+n)+c}")
def u7s(sw):
    for k, r in enumerate(regs7): e(f"v_mov_b32 v{20+k}, v{r}")
    for k, r in enumerate(regs7): e(f"{sw} v{r}, v{20+k}")
    for k, r in enumerate(regs7): e(f"v_add_f32 v{r}, v{r}, v{20+k}")
def u7c():
    u7s("v_permlane32_swap_b32")
    e(f"v_add_u32 v5, {L_CS}, v5")
    for sec in range(3): e(f"ds_write_b128 v5, v[{rg(4*sec)}:{rg(4*sec)+3}] offset:{256*sec}")
def e1_u1(): e("s_waitcnt vmcnt(0)"); both(u6a, u7a)
def e1_u2(): both(u6b, lambda: u7s("v_permlane16_swap_b32"))
def e1_u3(): both(u6c, u7c); e("s_waitcnt lgkmcnt(0)")
def xs_read():
    e("v_lshlrev_b32 v4, 7, v1", f"v_add_u32 v4, {L_XS}, v4")
    for q in range(8): e(f"ds_read_b128 v[{XS+4*q}:{XS+4*q+3}], v4 offset:{16*q}")
    e("s_waitcnt lgkmcnt(0)")
def down_loads():
    e("s_lshl_b32 s30, s27, 11", "s_lshl_b32 s31, s50, 7", "s_add_u32 s30, s30, s31")
    for n in range(14): e(f"buffer_load_dwordx4 v[{WD+4*n}:{WD+4*n+3}], v17, s[44:47], s30 offen {WNT}", "s_add_u32 s30, s30, 16384")
def wo_pf():
    e("s_lshl_b32 s30, s21, 7", "s_lshl_b32 s31, s26, 6", "s_add_u32 s30, s30, s31", "v_add_u32 v4, s30, v0",
      "v_and_b32 v5, 7, v4", "v_lshlrev_b32 v5, 7, v5", "v_lshrrev_b32 v4, 3, v4", "v_lshlrev_b32 v4, 11, v4", "v_add_u32 v4, v4, v5",
      "s_and_b32 s30, s20, 1", "s_lshl_b32 s30, s30, 10", "buffer_load_dword v244, v4, s[56:59], s30 offen")
    if P("WO2", 0): e("buffer_load_dword v244, v4, s[56:59], s30 offen offset:64")
    e("s_add_u32 s30, s30, 0x100000", "buffer_load_dword v245, v4, s[56:59], s30 offen")
    if P("WO2", 0): e("buffer_load_dword v245, v4, s[56:59], s30 offen offset:64")
a.srd(56, 84, 0x200000)
e("s_mul_i32 s27, s51, 224", "s_mul_i32 s30, s26, 112", "s_add_u32 s27, s27, s30")
SG = P("SG", 2)
e("s_lshr_b32 s60, s2, 3", f"s_mul_i32 s60, s60, {SG}", "s_lshr_b32 s60, s60, 5")
fixed = {0: [act0], 1: [act1], 2: [act2], SE: [e1_issue], SE+1: [e1_check], SE+3: [e1_u1], SE+4: [e1_u2], SE+5: [e1_u3], SE+6: [xs_read]}
T0 = P("T0", SE+3)
TS = [int(x) for x in os.environ.get("TS", f"{T0},{T0+SG},{T0+2*SG},{13}").split(",")]
stag = [(TS[0], lambda: burst(0)), (TS[1], lambda: burst(16)), (TS[2], down_loads), (TS[3], wo_pf)]
SST = P("SST", 0)
for t in range(17):
    e("s_barrier")
    if SST and t >= 2:
        r = 88 + 2*(t-2) if t < 9 else 62 + 2*(t-9)
        if t < 14: e(f"s_memrealtime s[{r}:{r+1}]")
    for f in fixed.get(t, []): f()
    for k, (t0, f) in enumerate(stag):
        if t0 <= t < t0 + SG:
            if SG == 1: f(); continue
            tgt = f"L_stg{k}"
            l = a.newlab()
            e(f"s_cmp_lg_u32 s60, {t - t0}", f"s_cbranch_scc1 {l}", f"s_getpc_b64 s[36:37]")
            lp = a.newlab(); a.lab(lp)
            e(f"s_add_u32 s36, s36, {tgt}-{lp}", "s_addc_u32 s37, s37, 0", "s_swappc_b64 s[34:35], s[36:37]")
            a.lab(l)
if SST:
    e("s_cmp_lg_u32 s25, 6", "s_cbranch_scc1 L_nosst", "s_waitcnt lgkmcnt(0)", "s_mul_i32 s30, s2, 128", "s_add_u32 s30, s30, 0x0F100000")
    e("v_mov_b32 v4, 0")
    for g in range(7):
        src = [86+4*g+q if g < 4 else 62+4*(g-4)+q for q in range(4)]
        for q in range(4): e(f"v_mov_b32 v{8+q}, s{src[q]}")
        e("s_mov_b64 exec, 1", f"buffer_store_dwordx4 v[8:11], v4, s[16:19], s30 offen offset:{16*g}", "s_mov_b64 exec, -1", "s_waitcnt vmcnt(0)")
    a.lab("L_nosst")
stamp("svc16")
e(f"v_mov_b32 v3, {L_FLG}")
for k, (t0, f) in enumerate(stag):
    if t0 == 17: lds_wait(4, 3, 36, 2); f()
e("s_waitcnt vmcnt(0)")
if P("DBGX", 0):
    e("s_lshl_b32 s30, s2, 14", "s_lshl_b32 s31, s26, 13", "s_add_u32 s30, s30, s31", "s_add_u32 s30, s30, 0x600000")
    for q in range(8): e(f"buffer_store_dwordx4 v[{XS+4*q}:{XS+4*q+3}], v2, s[16:19], s30 offen", "s_add_u32 s30, s30, 1024")
    e("s_waitcnt vmcnt(0)")
gemv(WG, 32)
lg = a.newlab()
e("s_cmp_ge_u32 s2, 224", f"s_cbranch_scc1 {lg}",
  "s_mul_i32 s30, s48, 28672", "s_mul_i32 s31, s26, 14336", "s_add_u32 s30, s30, s31", "s_lshl_b32 s31, s49, 8", "s_add_u32 s30, s30, s31", f"s_add_u32 s30, s30, {hex(WS_GU)}",
  "s_mov_b32 exec_lo, 0x00ff00ff", "s_mov_b32 exec_hi, 0x00ff00ff", f"buffer_store_dwordx2 v[{AC}:{AC+1}], v4, s[16:19], s30 offen sc1",
  "s_lshl_b32 s30, s49, 5", "s_lshl_b32 s31, s48, 3", "s_add_u32 s30, s30, s31", "s_lshl_b32 s31, s26, 2", "s_add_u32 s30, s30, s31", f"s_add_u32 s30, s30, {hex(WS_GUF)}",
  "v_mov_b32 v5, s52", "s_mov_b64 exec, 1", "s_waitcnt vmcnt(0)", "buffer_store_dword v5, v2, s[16:19], s30 offen sc1", "s_mov_b64 exec, -1")
a.lab(lg)
stamp("gupub")
for k, (t0, f) in enumerate(stag):
    if t0 == 18: f()
    if t0 == 19: lds_wait(4, 3, 40, 2); f()
e("s_mul_i32 s30, s51, 7", "s_lshr_b32 s30, s30, 1", "s_lshl_b32 s30, s30, 5", f"s_add_u32 s30, s30, {hex(WS_GUF)}", "v_lshlrev_b32 v5, 2, v0")
poll(6, 5, 30, 0xffffffff, sleep=P('SLG', 8))
stamp("gupoll")
e("v_min_u32 v4, 55, v0", "v_lshlrev_b32 v4, 3, v4", "s_lshl_b32 s30, s27, 2", f"s_add_u32 s30, s30, {hex(WS_GU)}")
for s in range(8): e(f"buffer_load_dwordx2 v[{40+2*s}:{41+2*s}], v4, s[16:19], s30 offen sc1", "s_add_u32 s30, s30, 14336")
e("s_waitcnt vmcnt(0)",
  "v_pk_add_f32 v[40:41], v[40:41], v[44:45]", "v_pk_add_f32 v[42:43], v[42:43], v[46:47]", "v_pk_add_f32 v[48:49], v[48:49], v[52:53]", "v_pk_add_f32 v[50:51], v[50:51], v[54:55]",
  "v_pk_add_f32 v[40:41], v[40:41], v[48:49]", "v_pk_add_f32 v[42:43], v[42:43], v[50:51]")
for v in (40, 41, 42, 43): bf16r(v)
for v in (40, 41):
    e(f"v_mov_b32 v{v+4}, v{v}"); sigmoid(v+4); e(f"v_mul_f32 v{v}, v{v}, v{v+4}"); bf16r(v)
e("v_pk_mul_f32 v[40:41], v[40:41], v[42:43]", "v_cvt_pk_bf16_f32 v40, v40, v41", "v_lshrrev_b32 v41, 16, v40", "v_and_b32 v40, 0xffff, v40",
  "v_and_b32 v4, 3, v0", "v_lshlrev_b32 v4, 7, v4", "v_lshrrev_b32 v5, 2, v0", "v_lshlrev_b32 v5, 2, v5", "v_add_u32 v4, v4, v5",
  "s_lshl_b32 s30, s26, 9", f"s_add_u32 s30, s30, {L_HS}", "v_add_u32 v4, s30, v4", "ds_write_b32 v4, v40", "ds_write_b32 v4, v41 offset:64",
  "v_lshrrev_b32 v1, 3, v0", "v_lshlrev_b32 v4, 6, v1", "v_add_u32 v4, s30, v4", "s_waitcnt lgkmcnt(0)")
for q in range(4): e(f"ds_read_b128 v[{XS+4*q}:{XS+4*q+3}], v4 offset:{16*q}")
e("s_waitcnt lgkmcnt(0)")
gemv(WD, 14)
e("s_lshl_b32 s31, s51, 1", "s_add_u32 s31, s31, s26", "s_lshl_b32 s30, s31, 12", "s_lshl_b32 s32, s50, 8", "s_add_u32 s30, s30, s32", f"s_add_u32 s30, s30, {hex(WS_YP)}",
  "s_mov_b32 exec_lo, 0x00ff00ff", "s_mov_b32 exec_hi, 0x00ff00ff", f"buffer_store_dwordx2 v[{AC}:{AC+1}], v4, s[16:19], s30 offen sc1",
  "s_lshl_b32 s30, s50, 7", "s_lshl_b32 s31, s31, 2", "s_add_u32 s30, s30, s31", f"s_add_u32 s30, s30, {hex(WS_YF)}",
  "v_mov_b32 v5, s52", "s_mov_b64 exec, 1", "s_waitcnt vmcnt(0)", "buffer_store_dword v5, v2, s[16:19], s30 offen sc1", "s_mov_b64 exec, -1")
if SG > 1:
    e("s_branch L_phase2")
    for k, (t0, f) in enumerate(stag):
        a.lab(f"L_stg{k}"); f(); e("s_setpc_b64 s[34:35]")

a.lab("L_phase2")
stamp("p2in")
a.srd(40, 80, 0x400000)
e("s_and_b32 s26, s25, 3", "s_lshr_b32 s27, s25, 2",
  "s_lshl_b32 s30, s28, 3", "s_lshl_b32 s31, s26, 1", "s_add_u32 s30, s30, s31", "s_lshl_b32 s33, s30, 15",
  "s_lshl_b32 s31, s27, 14", "s_add_u32 s33, s33, s31",
  "s_and_b32 s34, s29, 7", "s_lshl_b32 s34, s34, 1",
  "s_add_u32 s30, s30, s27", "s_lshl_b32 s30, s30, 4", "v_and_b32 v247, 15, v0", "v_add_u32 v246, s30, v247", "v_lshlrev_b32 v246, 11, v246",
  "v_bfe_u32 v1, v0, 4, 1", "v_lshlrev_b32 v1, 5, v1", "v_lshrrev_b32 v3, 5, v0", "v_lshlrev_b32 v3, 4, v3", "v_add_u32 v1, v1, v3",
  "s_lshl_b32 s31, s29, 7", "v_add3_u32 v246, v246, v1, s31",
  "buffer_load_dwordx4 v[248:251], v246, s[8:11], 0 offen", "buffer_load_dwordx4 v[252:255], v246, s[8:11], 0 offen offset:64",
  "s_and_b32 s30, s30, 127", "v_add_u32 v247, s30, v247",
  "v_lshlrev_b32 v4, 3, v247", f"v_add_u32 v4, {L_ST2}, v4", f"v_mov_b32 v5, {L_MISC}", "ds_read_b64 v[240:241], v4", "ds_read_b64 v[242:243], v5",
  "v_lshlrev_b32 v245, 1, v1",
  "s_lshl_b32 s31, s27, 15", "v_add_u32 v12, s31, v2", "v_xor_b32 v3, 32768, v12",
  "v_and_b32 v4, 60, v0", "v_lshlrev_b32 v4, 5, v4", "v_bfe_u32 v5, v0, 3, 2", "v_lshlrev_b32 v5, 5, v5", "v_add_u32 v4, v4, v5",
  "v_and_b32 v5, 3, v0", "v_lshlrev_b32 v5, 3, v5", "v_add_u32 v4, v4, v5", "s_lshl_b32 s31, s27, 16", "v_add_u32 v4, s31, v4",
  "v_xor_b32 v5, 32, v4", "v_xor_b32 v6, 64, v4", "v_xor_b32 v7, 96, v4",
  "s_waitcnt lgkmcnt(0)", "v_readfirstlane_b32 s55, v243", "v_mov_b32 v244, v241",
  "s_cmp_lg_u32 s25, 0", "s_cbranch_scc1 L_y1")
e("v_lshlrev_b32 v8, 2, v0", "s_lshl_b32 s30, s28, 8", f"s_add_u32 s30, s30, {hex(WS_OFL)}")
poll(9, 8, 30, 0xffffffff, 0xffffffff, sleep=P("SLO", 2))
a.lab("L_y1")
e(f"s_setprio {P('PR2A', 0)}", "s_cmp_lt_u32 s25, 4", "s_cbranch_scc1 L_y1b", f"s_setprio {P('PR2B', 0)}")
a.lab("L_y1b")
e("s_barrier")
stamp("y1")
PD = P("PD", 4)
def oload(n):
    return [f"s_add_u32 s36, s34, {n}", "s_and_b32 s36, s36, 15", "s_lshl_b32 s36, s36, 10", "s_add_u32 s36, s36, s33",
            f"buffer_load_dwordx4 v[{64+8*n}:{67+8*n}], v12, s[16:19], s36 offen {OFL}", f"buffer_load_dwordx4 v[{68+8*n}:{71+8*n}], v3, s[16:19], s36 offen {OFL}"]
for n in range(PD): e(*oload(n))
F2 = [192, 208, 224]
def reads2(n):
    L = [f"s_add_u32 s35, s34, {n}", "s_and_b32 s35, s35, 15", "s_lshl_b32 s35, s35, 12"]
    L += [f"v_add_u32 v{8+cb}, s35, v{4+cb}" for cb in range(4)]
    R = []
    for cb in range(4):
        f = F2[n % 3] + 4*cb
        R += [f"ds_read_b64_tr_b16 v[{f}:{f+1}], v{8+cb}", f"ds_read_b64_tr_b16 v[{f+2}:{f+3}], v{8+cb} offset:2048"]
    return L, R
for n in range(2):
    L, R = reads2(n); e(*L); e(*R)
for n in range(16):
    if n + PD < 16: e(*oload(n + PD))
    if n < 14:
        L, R = reads2(n+2); e(*L)
    else: R = []
    e(f"s_waitcnt vmcnt({2*min(PD, 15-n)}) lgkmcnt({8 if n < 15 else 0})")
    q = 0
    for cb in range(4):
        for rb in range(2):
            d = 16 + (rb*4+cb)*4; f = F2[n % 3] + 4*cb
            e(f"v_mfma_f32_16x16x32_bf16 v[{d}:{d+3}], v[{f}:{f+3}], v[{64+8*n+4*rb}:{67+8*n+4*rb}], " + ("0" if n == 0 else f"v[{d}:{d+3}]"))
            if q < len(R): e(R[q])
            q += 1
stamp("g2end")
e("s_lshl_b32 s30, s25, 12", f"s_add_u32 s30, s30, {S}", "v_add_u32 v4, s30, v2", "v_xor_b32 v5, 16384, v4",
  "s_lshr_b32 s30, s55, 7", "s_cmp_eq_u32 s30, s28", "s_cselect_b32 s56, 1, 0",
  "s_nop 1")
for cb in range(4): e(f"ds_write_b128 v4, v[{32+4*cb}:{35+4*cb}] offset:{cb*1024}")
e("s_cmp_eq_u32 s56, 1", "s_cbranch_scc1 L_sel")
def final(sel):
    if sel:
        l = a.newlab()
        e("s_cmp_lg_u32 s25, 6", f"s_cbranch_scc1 {l}", "v_lshlrev_b32 v8, 2, v0", "s_lshl_b32 s30, s29, 7", f"s_add_u32 s30, s30, {hex(WS_YF)}")
        poll(9, 8, 30, 0xffffffff)
        e("v_lshrrev_b32 v8, 4, v0", "v_lshlrev_b32 v8, 12, v8", "v_and_b32 v9, 15, v0", "v_lshlrev_b32 v9, 4, v9", "v_add_u32 v8, v8, v9",
          "s_lshl_b32 s30, s29, 8", f"s_add_u32 s30, s30, {hex(WS_YP)}")
        for n in range(8): e(f"buffer_load_dwordx4 v[{64+4*n}:{67+4*n}], v8, s[16:19], s30 offen sc1", "s_add_u32 s30, s30, 16384")
        e("s_waitcnt vmcnt(0)")
        for n in range(1, 8): e(f"v_pk_add_f32 v[64:65], v[64:65], v[{64+4*n}:{65+4*n}]", f"v_pk_add_f32 v[66:67], v[66:67], v[{66+4*n}:{67+4*n}]")
        for sw in ("v_permlane16_swap_b32", "v_permlane32_swap_b32"):
            for c in range(4): e(f"v_mov_b32 v{68+c}, v{64+c}")
            for c in range(4): e(f"{sw} v{64+c}, v{68+c}")
            for c in range(4): e(f"v_add_f32 v{64+c}, v{64+c}, v{68+c}")
        for c in range(4):
            bf16r(64+c); e(f"v_mul_f32 v{64+c}, v{64+c}, v242"); bf16r(64+c)
        a.lab(l)
    e("s_waitcnt lgkmcnt(0)", "s_barrier")
    stamp("y2")
    for cb in range(4): e(f"ds_read_b128 v[{32+4*cb}:{35+4*cb}], v5 offset:{cb*1024}")
    if sel:
        l = a.newlab()
        e("s_cmp_lg_u32 s25, 6", f"s_cbranch_scc1 {l}", "ds_write_b128 v9, v[64:67]")
        a.lab(l)
        e("s_waitcnt lgkmcnt(0)", "s_barrier")
        for pr in range(2): e(f"ds_read_b128 v[{96+8*pr}:{99+8*pr}], v245 offset:{128*pr}", f"ds_read_b128 v[{100+8*pr}:{103+8*pr}], v245 offset:{128*pr+16}")
        e("s_and_b32 s55, s55, 127", "v_cmp_eq_u32 vcc, s55, v247", "v_mov_b32 v14, 0", "v_mov_b32 v3, 1.0", "s_waitcnt lgkmcnt(0)", "v_cndmask_b32 v14, v14, v3, vcc")
    for cb in range(4):
        if not sel: e(f"s_waitcnt lgkmcnt({3-cb})")
        e(f"v_pk_add_f32 v[{16+4*cb}:{17+4*cb}], v[{16+4*cb}:{17+4*cb}], v[{32+4*cb}:{33+4*cb}]", f"v_pk_add_f32 v[{18+4*cb}:{19+4*cb}], v[{18+4*cb}:{19+4*cb}], v[{34+4*cb}:{35+4*cb}]",
          f"v_cvt_pk_bf16_f32 v{48+2*cb}, v{16+4*cb}, v{17+4*cb}", f"v_cvt_pk_bf16_f32 v{49+2*cb}, v{18+4*cb}, v{19+4*cb}")
    e("s_nop 1")
    for pr in range(2): e(f"v_permlane16_swap_b32 v{48+4*pr}, v{50+4*pr}", f"v_permlane16_swap_b32 v{49+4*pr}, v{51+4*pr}")
    e("s_waitcnt vmcnt(0)")
    for pr in range(2):
        for c in range(4):
            x = 248 + 4*pr + c; at = 48 + 4*pr + c
            e(f"v_lshlrev_b32 v8, 16, v{x}", f"v_and_b32 v9, 0xffff0000, v{x}",
              f"v_lshlrev_b32 v12, 16, v{at}", f"v_and_b32 v13, 0xffff0000, v{at}",
              "v_pk_add_f32 v[10:11], v[8:9], v[240:241] op_sel_hi:[1,0]",
              "v_pk_add_f32 v[8:9], v[8:9], v[12:13]",
              "v_cvt_pk_bf16_f32 v10, v10, v11", "v_cvt_pk_bf16_f32 v8, v8, v9",
              "v_and_b32 v11, 0xffff0000, v10", "v_lshlrev_b32 v10, 16, v10",
              "v_and_b32 v9, 0xffff0000, v8", "v_lshlrev_b32 v8, 16, v8",
              "v_pk_mul_f32 v[10:11], v[10:11], v[244:245] op_sel_hi:[1,0]",
              "v_cvt_pk_bf16_f32 v10, v10, v11", "v_and_b32 v11, 0xffff0000, v10", "v_lshlrev_b32 v10, 16, v10")
            if sel:
                e(f"v_fmac_f32 v10, v14, v{96+8*pr+2*c}", f"v_fmac_f32 v11, v14, v{97+8*pr+2*c}", "v_cvt_pk_bf16_f32 v10, v10, v11",
                  "v_and_b32 v11, 0xffff0000, v10", "v_lshlrev_b32 v10, 16, v10")
            e("v_pk_add_f32 v[8:9], v[8:9], v[10:11]", f"v_cvt_pk_bf16_f32 v{at}, v8, v9")
        e(f"buffer_store_dwordx4 v[{48+4*pr}:{51+4*pr}], v246, s[40:43], 0 offen offset:{64*pr}")
    stamp("fin")
    if STAMP: e("s_branch L_stamp")
    else: e("s_endpgm")
final(False)
a.lab("L_sel")
final(True)
if STAMP:
    a.lab("L_stamp")
    e("s_waitcnt vmcnt(0)", "s_memtime s[50:51]" if P("CYC", 0) else "s_memrealtime s[50:51]", f"s_cmp_lg_u32 s25, {STAMP-1}", "s_cbranch_scc1 L_end", "s_waitcnt lgkmcnt(0)",
      "s_mul_i32 s30, s2, 80", "s_add_u32 s30, s30, 0x0F000000")
    for q in range(16): e(f"v_mov_b32 v{4+q}, s{86+q}")
    e("v_mov_b32 v20, s50", "v_mov_b32 v21, s51", "v_mov_b32 v22, s50", "v_mov_b32 v23, s51", "v_mov_b32 v1, 0", "s_mov_b64 exec, 1")
    for q in range(5): e(f"buffer_store_dwordx4 v[{4+4*q}:{7+4*q}], v1, s[16:19], s30 offen offset:{16*q}")
a.lab("L_end"); e("s_endpgm")
a.raw('.section .rodata,"a"\n.p2align 6'); a.raw(kd(K, 256, 102))
sys.stdout.write(a.text())
```

```python
import sys, os
from lib import *
def P(n, d): return int(os.environ.get(n, d))
STAMP = P("STAMP", 0)
SA = P("SA", 4)
SB = P("SB", 8)
SE = P("SE", 4)
HOT = P("HOT", 1)
WNT = os.environ.get("WNT", "nt")
SPIN = 1 << 17
OFL = os.environ.get("OFL", "sc1")
WS_OF, WS_KVP, WS_ZP, WS_ST, WS_CSP = 0x0, 0x400000, 0x500000, 0x510000, 0x520000
WS_GU, WS_YP = 0x560000, 0x580000
WS_E1T, WS_KF, WS_OFL, WS_GUF, WS_YF, WS_EP = 0x5A0000, 0x5A1000, 0x5A3000, 0x5A5000, 0x5A6000, 0x5A8000
WS_SIZE = 0x10000000
LOG2E, EPS6, EPS5 = 0x3FB8AA3B, 0x358637BD, 0x3727C5AC
STAGE = 40960
S = 131072
L_INV, L_NB, L_CS, L_KEY, L_FLG, L_MISC, L_ST2, L_HS, L_UPD = S, S+512, S+1024, S+1792, S+1856, S+1824, S+2048, S+3072, S
L_XS, L_EX1, L_EX2, L_CST = S+4096, S+4096, S+16384, S+16384
a = Asm(); e = a.e
K = NAME + "_kernel"
a.raw("; @launch grid=(256,1,1) block=(512,1,1) lds=163840")
a.raw('.amdgcn_target "amdgcn-amd-amdhsa--gfx950"\n.text')
a.kernel_begin(K)
STK = os.environ.get("STK", "b0,g1end,kvpub,kvpoll,opub,y1,g2end").split(",")
def stamp(n):
    if not STAMP: return
    if n == 0: e("s_memtime s[86:87]" if P("CYC", 0) else "s_memrealtime s[86:87]")
    elif n in STK:
        k = STK.index(n) + 1
        e(f"{'s_memtime' if P('CYC', 0) else 's_memrealtime'} s[{86+2*k}:{87+2*k}]")
def bf16r(v): e(f"v_cvt_pk_bf16_f32 v{v}, v{v}, v{v}", f"v_and_b32 v{v}, 0xffff0000, v{v}")
def sigmoid(v): e(f"v_mul_f32 v{v}, {hex(LOG2E ^ 0x80000000)}, v{v}", f"v_exp_f32 v{v}, v{v}", "s_nop 0", f"v_add_f32 v{v}, 1.0, v{v}", f"v_rcp_f32 v{v}, v{v}", "s_nop 0")
def poll(vdst, voff, soff, mask_lo, mask_hi=0, sleep=1):
    lp, ld = a.newlab("LP"), a.newlab("LD")
    e(f"s_mov_b32 exec_lo, {hex(mask_lo)}", f"s_mov_b32 exec_hi, {hex(mask_hi)}", f"s_mov_b32 s39, {SPIN}")
    a.lab(lp)
    e(f"buffer_load_dword v{vdst}, v{voff}, s[16:19], s{soff} offen sc1", "s_waitcnt vmcnt(0)",
      f"v_cmp_ne_u32 vcc, s52, v{vdst}", f"s_cbranch_vccz {ld}", f"s_sleep {sleep}",
      "s_sub_u32 s39, s39, 1", f"s_cbranch_scc0 {lp}")
    a.lab(ld)
    e("s_mov_b64 exec, -1")
def lds_wait(vt, vaddr, off, sleep=0):
    lp, ld = a.newlab("LW"), a.newlab("LE")
    e(f"s_mov_b32 s39, {SPIN*8}")
    a.lab(lp)
    e(f"ds_read_b32 v{vt}, v{vaddr} offset:{off}", "s_waitcnt lgkmcnt(0)", f"v_cmp_eq_u32 vcc, 0, v{vt}", f"s_cbranch_vccz {ld}")
    if sleep: e(f"s_sleep {sleep}")
    e("s_sub_u32 s39, s39, 1", f"s_cbranch_scc0 {lp}")
    a.lab(ld)

stamp(0)
e("s_cmp_ge_u32 s2, 256", "s_cbranch_scc1 L_end")
e("s_load_dwordx4 s[4:7], s[0:1], 0", "s_load_dwordx8 s[72:79], s[0:1], 32", "s_load_dwordx2 s[80:81], s[0:1], 64",
  "s_load_dwordx2 s[82:83], s[0:1], 80", "s_load_dwordx2 s[84:85], s[0:1], 16")
e("s_and_b32 s20, s2, 7", "s_lshr_b32 s21, s2, 3", "s_and_b32 s22, s20, 1", "s_lshl_b32 s22, s22, 3",
  "s_and_b32 s23, s21, 7", "s_add_u32 s22, s22, s23",
  "s_lshr_b32 s23, s20, 1", "s_lshl_b32 s23, s23, 2", "s_lshr_b32 s24, s21, 3", "s_add_u32 s23, s23, s24",
  "s_lshr_b32 s28, s20, 1", "s_lshl_b32 s28, s28, 2", "s_and_b32 s24, s21, 3", "s_add_u32 s28, s28, s24",
  "s_and_b32 s29, s20, 1", "s_lshl_b32 s29, s29, 3", "s_lshr_b32 s24, s21, 2", "s_add_u32 s29, s29, s24")
e("v_lshrrev_b32 v1, 6, v0", "v_and_b32 v0, 63, v0", "v_lshlrev_b32 v2, 4, v0", "v_readfirstlane_b32 s25, v1")
e("s_waitcnt lgkmcnt(0)")
e(f"s_mov_b32 s30, {hex(WS_EP)}", "s_load_dword s52, s[82:83], s30")
a.srd(8, 4, 0x400000); a.srd(12, 6, 0x600000); a.srd(16, 82, WS_SIZE)
e("s_cmp_ge_u32 s25, 6", "s_cbranch_scc1 L_service", "s_cmp_ge_u32 s25, 4", "s_cbranch_scc1 L_loader")

if P("PRIO", 1): e("s_setprio 2")
a.srd(40, 72, 2048)
e("s_lshr_b32 s26, s25, 1", "s_and_b32 s27, s25, 1")
e("s_lshl_b32 s30, s22, 7", "s_lshl_b32 s31, s23, 3", "s_add_u32 s30, s30, s31", "s_lshl_b32 s31, s25, 1", "s_add_u32 s33, s30, s31",
  "s_lshl_b32 s30, s33, 11")
for q in range(4): e(f"buffer_load_dwordx4 v[{64+4*q}:{67+4*q}], v2, s[8:11], s30 offen offset:{q*1024}")
e("buffer_load_dwordx4 v[112:115], v2, s[40:43], 0 offen", "buffer_load_dwordx4 v[116:119], v2, s[40:43], 0 offen offset:1024")
e("v_cmp_le_u32 vcc, 24, v0", "v_mov_b32 v3, 0", "v_mov_b32 v4, 5760", "v_cndmask_b32 v3, v3, v4, vcc", "v_add_u32 v3, v3, v2",
  "v_cmp_le_u32 vcc, 48, v0", "v_mov_b32 v4, 0x7ff00000", "s_lshl_b32 s30, s22, 6", "s_lshl_b32 s31, s25, 4", "v_cndmask_b32 v3, v3, v4, vcc",
  "s_add_u32 s30, s30, s31", "s_mul_i32 s30, s30, 6144", "s_mul_i32 s31, s23, 384", "s_add_u32 s30, s30, s31")
for n in range(8): e(f"buffer_load_dwordx4 v[{80+4*n}:{83+4*n}], v3, s[12:15], s30 offen", "s_add_u32 s30, s30, 12288")
NHOT = 0
if HOT:
    NHOT = 1
    e("s_mul_i32 s30, s21, 96", "s_mul_i32 s31, s25, 24", "s_add_u32 s30, s30, s31", "v_add_u32 v1, s30, v0", "v_lshlrev_b32 v1, 11, v1",
      "v_cmp_gt_u32 vcc, 24, v0", "s_lshr_b32 s31, s20, 1", "s_lshl_b32 s31, s31, 9", "s_add_u32 s31, s31, 384", "v_cndmask_b32 v1, v4, v1, vcc",
      "s_bitcmp1_b32 s20, 1", "s_cselect_b32 s31, 0x600000, s31",
      "buffer_load_dword v63, v1, s[12:15], s31 offen")
e("s_lshl_b32 s30, s26, 13",
  "v_and_b32 v1, 15, v0", "v_lshrrev_b32 v5, 4, v0", "v_lshrrev_b32 v3, 1, v1", "v_xor_b32 v3, v3, v5",
  "v_lshlrev_b32 v3, 4, v3", "v_lshlrev_b32 v1, 7, v1", "v_add_u32 v1, v1, v3", "v_add_u32 v4, s30, v1",
  "v_xor_b32 v5, 64, v4", f"v_add_u32 v8, {2*STAGE}, v4", f"v_add_u32 v9, {2*STAGE}, v5")
e("v_lshrrev_b32 v1, 4, v0", "v_lshlrev_b32 v1, 10, v1", "v_bfe_u32 v6, v0, 2, 2", "v_lshlrev_b32 v3, 7, v6", "v_add_u32 v1, v1, v3",
  "v_lshrrev_b32 v6, 1, v6", "v_xor_b32 v6, s27, v6", "v_lshlrev_b32 v6, 1, v6", "v_bfe_u32 v3, v0, 4, 1", "v_or_b32 v6, v6, v3",
  "v_lshlrev_b32 v6, 5, v6", "v_add_u32 v1, v1, v6", "v_and_b32 v6, 3, v0", "v_lshlrev_b32 v6, 3, v6", "v_add_u32 v10, v1, v6")
for s in (2, 1, 0): e(f"v_add_u32 v{10+s}, {s*STAGE+16384}, v10")
for s in (2, 1, 0): e(f"v_xor_b32 v{13+s}, 32, v{10+s}")
e(f"s_waitcnt vmcnt({10+NHOT})")
for rw in range(2):
    for i in range(8): e(f"v_lshlrev_b32 v{16+16*rw+2*i}, 16, v{64+8*rw+i}", f"v_and_b32 v{17+16*rw+2*i}, 0xffff0000, v{64+8*rw+i}")
e("v_pk_add_f32 v[48:49], v[16:17], v[18:19]", "v_pk_add_f32 v[50:51], v[32:33], v[34:35]")
for i in range(2, 8): e(f"v_pk_add_f32 v[48:49], v[48:49], v[{16+2*i}:{17+2*i}]", f"v_pk_add_f32 v[50:51], v[50:51], v[{32+2*i}:{33+2*i}]")
e("v_add_f32 v48, v48, v49", "v_add_f32 v50, v50, v51")
a.wave_allreduce([48, 50], [49, 51])
e("v_mul_f32 v48, 0xba800000, v48", "v_mul_f32 v50, 0xba800000, v50")
e("v_mov_b32 v52, 0", "v_mov_b32 v53, 0", "v_mov_b32 v54, 0", "v_mov_b32 v55, 0")
SH = "op_sel_hi:[1,0]"
for i in range(8):
    e(f"v_pk_add_f32 v[56:57], v[{16+2*i}:{17+2*i}], v[48:49] {SH}", f"v_pk_add_f32 v[58:59], v[{32+2*i}:{33+2*i}], v[50:51] {SH}",
      "v_pk_fma_f32 v[52:53], v[56:57], v[56:57], v[52:53]", "v_pk_fma_f32 v[54:55], v[58:59], v[58:59], v[54:55]")
e("v_add_f32 v52, v52, v53", "v_add_f32 v54, v54, v55")
a.wave_allreduce([52, 54], [53, 55])
e("v_mul_f32 v52, 0x3a800000, v52", "v_mul_f32 v54, 0x3a800000, v54")
for v in (48, 50, 52, 54): bf16r(v)
e(f"v_add_f32 v52, {hex(EPS5)}, v52", f"v_add_f32 v54, {hex(EPS5)}, v54"); bf16r(52); bf16r(54)
e("v_sqrt_f32 v52, v52", "v_sqrt_f32 v54, v54", "s_nop 0"); bf16r(52); bf16r(54)
e("v_rcp_f32 v52, v52", "v_rcp_f32 v54, v54")
for rw in range(2):
    b = 16 + 16*rw
    for i in range(8): e(f"v_pk_add_f32 v[{b+2*i}:{b+2*i+1}], v[{b+2*i}:{b+2*i+1}], v[{48+2*rw}:{49+2*rw}] {SH}")
    for i in range(8): e(f"v_cvt_pk_bf16_f32 v{64+8*rw+i}, v{b+2*i}, v{b+2*i+1}")
    for i in range(8): e(f"v_lshlrev_b32 v{b+2*i}, 16, v{64+8*rw+i}", f"v_and_b32 v{b+2*i+1}, 0xffff0000, v{64+8*rw+i}")
    for i in range(8): e(f"v_pk_mul_f32 v[{b+2*i}:{b+2*i+1}], v[{b+2*i}:{b+2*i+1}], v[{52+2*rw}:{53+2*rw}] {SH}")
    for i in range(8): e(f"v_cvt_pk_bf16_f32 v{64+8*rw+i}, v{b+2*i}, v{b+2*i+1}")
e("v_mov_b32 v49, 0", "v_mov_b32 v51, 0", f"s_waitcnt vmcnt({8+NHOT})")
for i in range(8): e(f"v_dot2_f32_bf16 v49, v{64+i}, v{112+i}, v49", f"v_dot2_f32_bf16 v51, v{72+i}, v{112+i}, v51")
e("s_nop 1")
a.wave_allreduce([49, 51], [53, 55])
e("v_cmp_eq_u32 vcc, 1, v0", "v_mov_b32 v59, 0", "s_lshl_b32 s30, s33, 4", f"s_add_u32 s30, s30, {hex(WS_ST)}",
  "v_cndmask_b32 v56, v48, v50, vcc", "v_cndmask_b32 v57, v52, v54, vcc", "v_cndmask_b32 v58, v49, v51, vcc",
  "v_ashrrev_i32 v60, 31, v58", "v_or_b32 v60, 0x80000000, v60", "v_xor_b32 v60, v60, v58", "v_and_b32 v60, 0xfffff800, v60",
  "s_sub_u32 s31, 2047, s33", "v_sub_u32 v61, s31, v0", "v_or_b32 v60, v60, v61",
  "s_lshl_b32 s31, s25, 3", f"s_add_u32 s31, s31, {L_KEY}", "v_lshlrev_b32 v61, 2, v0", "v_add_u32 v61, s31, v61",
  "s_mov_b64 exec, 3",
  "buffer_store_dwordx4 v[56:59], v2, s[16:19], s30 offen sc1", "ds_write_b32 v61, v60",
  "s_mov_b64 exec, -1")
e("v_mov_b32 v60, 0x3f80", "v_mov_b32 v61, 0x3f800000")
for c in range(8): e(f"v_mov_b32 v{16+c}, 0")
for n in range(8):
    e(f"s_waitcnt vmcnt({7-n+NHOT+1})")
    for c in range(4): e(f"v_dot2_f32_bf16 v{16+2*c}, v{80+4*n+c}, v60, v{16+2*c}", f"v_dot2_f32_bf16 v{17+2*c}, v{80+4*n+c}, v61, v{17+2*c}")
e("s_mul_i32 s30, s25, 1536", f"s_add_u32 s30, s30, {L_CST}", "v_lshlrev_b32 v1, 5, v0", "v_add_u32 v1, s30, v1",
  "s_mov_b32 exec_hi, 0xffff", "ds_write_b128 v1, v[16:19]", "ds_write_b128 v1, v[20:23] offset:16", "s_mov_b64 exec, -1")
ACC = 64
FR = [168, 208]
def reads(s, k2, st):
    f = FR[st]; ab = 4 + k2 if s < 2 else 8 + k2; ao = (s & 1) * STAGE
    def rb(i): return f"ds_read_b128 v[{f+4*i}:{f+4*i+3}], v{ab} offset:{ao + i*2048}"
    def rt(c):
        base = 10 + s if (c & 1) == 0 else 13 + s
        o = (c >> 1) * 8192 + k2 * 4096
        return [f"ds_read_b64_tr_b16 v[{f+16+4*c}:{f+17+4*c}], v{base} offset:{o}", f"ds_read_b64_tr_b16 v[{f+18+4*c}:{f+19+4*c}], v{base} offset:{o+512}"]
    return [rb(0)] + rt(0) + [rb(1)] + rt(1) + [rb(2)] + rt(2) + [rb(3)] + rt(3) + rt(4) + rt(5)
def mfmas(st, zero=False):
    f = FR[st]; L = []
    for c in range(6):
        for r in range(4):
            d = ACC + (c*4 + r)*4
            A = f"v[{f+4*r}:{f+4*r+3}]"; B = f"v[{f+16+4*c}:{f+19+4*c}]"
            if c < 2: A, B = B, A
            L.append(f"v_mfma_f32_16x16x32_bf16 v[{d}:{d+3}], {A}, {B}, " + ("0" if zero else f"v[{d}:{d+3}]"))
    return L
st = 0
def step(s, snext, first=False):
    global st
    for k2 in range(2):
        e("s_waitcnt vmcnt(0) lgkmcnt(0)" if (first and k2 == 1) else "s_waitcnt lgkmcnt(0)")
        if k2 == 1:
            e("s_barrier"); R = reads(snext, 0, st ^ 1)
        else: R = reads(s, 1, st ^ 1)
        M = mfmas(st, first and k2 == 0)
        for q in range(24):
            e(M[q])
            if q < 16: e(R[q])
        st ^= 1
e("s_waitcnt lgkmcnt(0)", "s_barrier")
stamp("b0")
e(*reads(0, 0, 0))
step(0, 1, True)
e("s_mov_b32 s31, 0")
a.lab("L_cloop")
step(1, 2); step(2, 0); step(0, 1)
e("s_add_u32 s31, s31, 1", "s_cmp_lt_u32 s31, 5", "s_cbranch_scc1 L_cloop")
stamp("g1end")
e("s_waitcnt lgkmcnt(0)",
  "v_lshrrev_b32 v1, 4, v0", "v_lshlrev_b32 v1, 4, v1", "s_lshl_b32 s30, s26, 8", f"s_add_u32 s30, s30, {L_INV}", "v_add_u32 v3, s30, v1",
  "v_and_b32 v4, 15, v0", "v_lshlrev_b32 v4, 2, v4", "s_lshl_b32 s31, s27, 7", f"s_add_u32 s31, s31, {L_CS}", "v_add_u32 v5, s31, v4",
  "v_add_u32 v6, s30, v4", "v_add_u32 v7, s31, v1")
for r in range(4): e(f"ds_read_b128 v[{16+4*r}:{19+4*r}], v3 offset:{64*r}", f"ds_read_b128 v[{32+4*r}:{35+4*r}], v3 offset:{512+64*r}")
EV = [48, 50, 60, 62]
for q in range(4): e(f"ds_read_b32 v{EV[q]}, v5 offset:{256*(1+(q>>1)) + 64*(q&1)}")
e(f"s_mov_b32 s34, {hex(LOG2E)}", f"s_mov_b32 s35, {hex(LOG2E)}", f"s_mov_b32 s36, {hex(EPS6)}")
PK, VB, KV, Z, ON = 168, 184, 200, 216, 224
for q in range(4): e(f"v_mov_b32 v{ON+q}, 0x3f803f80")
e("s_waitcnt lgkmcnt(0)", "s_add_u32 s52, s52, 1")
def sel1(q): return (f"v[{EV[q]}:{EV[q]+1}]", SH)
def phi2(r, dst, t):
    e(f"v_pk_mul_f32 v[{t}:{t+1}], v[{r}:{r+1}], s[34:35]",
      f"v_exp_f32_e64 v{t}, v{t} clamp", f"v_exp_f32_e64 v{t+1}, v{t+1} clamp",
      f"v_max_f32 v{r}, s36, v{r}", f"v_max_f32 v{r+1}, s36, v{r+1}",
      f"v_pk_add_f32 v[{t}:{t+1}], v[{t}:{t+1}], v[{r}:{r+1}]",
      f"v_cvt_pk_bf16_f32 v{dst}, v{t}, v{t+1}")
for rp in range(2):
    for c in range(2, 6):
        for r in (2*rp, 2*rp+1):
            d = ACC + (c*4+r)*4; cs, sl = sel1(c-2)
            e(f"v_pk_mul_f32 v[52:53], v[{32+4*r}:{33+4*r}], {cs} {sl}", f"v_pk_mul_f32 v[54:55], v[{34+4*r}:{35+4*r}], {cs} {sl}",
              f"v_pk_fma_f32 v[{d}:{d+1}], v[{d}:{d+1}], v[{16+4*r}:{17+4*r}], v[52:53]", f"v_pk_fma_f32 v[{d+2}:{d+3}], v[{d+2}:{d+3}], v[{18+4*r}:{19+4*r}], v[54:55]")
            if c < 4:
                o = PK + (c-2)*8 + rp*4 + (r & 1)*2
                phi2(d, o, 56); phi2(d+2, o+1, 58)
            else:
                o = VB + (c-4)*8 + rp*4 + (r & 1)*2
                e(f"v_cvt_pk_bf16_f32 v{o}, v{d}, v{d+1}", f"v_cvt_pk_bf16_f32 v{o+1}, v{d+2}, v{d+3}")
    e("s_nop 1")
    for db in range(2):
        A = f"v[{PK+8*db+4*rp}:{PK+8*db+4*rp+3}]"
        for eb in range(2):
            d = KV + 8*eb + 4*db
            e(f"v_mfma_f32_16x16x32_bf16 v[{d}:{d+3}], {A}, v[{VB+8*eb+4*rp}:{VB+8*eb+4*rp+3}], " + ("0" if rp == 0 else f"v[{d}:{d+3}]"))
        d = Z + 4*db
        e(f"v_mfma_f32_16x16x32_bf16 v[{d}:{d+3}], {A}, v[{ON}:{ON+3}], " + ("0" if rp == 0 else f"v[{d}:{d+3}]"))
stamp("kvmfma")
e("v_mov_b32 v10, 1", "s_lshl_b32 s38, s23, 1", "s_add_u32 s38, s38, s27",
  f"v_mov_b32 v4, {L_FLG}", "v_mov_b32 v5, 1", "s_lshl_b32 s31, s25, 2", "v_add_u32 v9, s31, v4", "v_xor_b32 v8, 8, v9",
  "s_lshl_b32 s30, s38, 4", "s_add_u32 s30, s30, s22", "s_lshl_b32 s31, s30, 11", "s_lshl_b32 s32, s26, 10", "s_add_u32 s31, s31, s32", f"s_add_u32 s31, s31, {hex(WS_KVP)}",
  "s_lshl_b32 s30, s30, 7", f"s_add_u32 s30, s30, {hex(WS_ZP)}",
  "s_lshl_b32 s32, s38, 7", "s_lshl_b32 s33, s22, 3", "s_add_u32 s32, s32, s33", "s_lshl_b32 s33, s26, 2", "s_add_u32 s32, s32, s33", f"s_add_u32 s32, s32, {hex(WS_KF)}",
  "s_cmp_eq_u32 s26, 0", "s_cbranch_scc1 L_wr0")
e("s_lshl_b32 s33, s27, 12", f"s_add_u32 s33, s33, {L_EX1+4096}", "v_add_u32 v3, s33, v2", "s_lshl_b32 s33, s27, 11", f"s_add_u32 s33, s33, {L_EX1}", "v_add_u32 v1, s33, v2",
  f"ds_write_b128 v3, v[{KV}:{KV+3}]", f"ds_write_b128 v3, v[{KV+4}:{KV+7}] offset:1024", f"ds_write_b128 v3, v[{Z}:{Z+3}] offset:2048", f"ds_write_b128 v3, v[{Z+4}:{Z+7}] offset:3072",
  "ds_write_b32 v9, v5")
lds_wait(5, 8, 0)
e("ds_read_b128 v[228:231], v1", "ds_read_b128 v[232:235], v1 offset:1024", "s_waitcnt lgkmcnt(0)")
for q in range(4): e(f"v_pk_add_f32 v[{KV+8+2*q}:{KV+9+2*q}], v[{KV+8+2*q}:{KV+9+2*q}], v[{228+2*q}:{229+2*q}]")
for p in range(4): e(f"v_cvt_pk_bf16_f32 v{PK+p}, v{KV+8+2*p}, v{KV+9+2*p}")
e(f"buffer_store_dwordx4 v[{PK}:{PK+3}], v2, s[16:19], s31 offen sc1", "s_branch L_kvflag")
a.lab("L_wr0")
e("s_lshl_b32 s33, s27, 11", f"s_add_u32 s33, s33, {L_EX1}", "v_add_u32 v3, s33, v2", "s_lshl_b32 s33, s27, 12", f"s_add_u32 s33, s33, {L_EX1+4096}", "v_add_u32 v1, s33, v2",
  f"ds_write_b128 v3, v[{KV+8}:{KV+11}]", f"ds_write_b128 v3, v[{KV+12}:{KV+15}] offset:1024", "ds_write_b32 v9, v5")
lds_wait(5, 8, 0)
for q in range(4): e(f"ds_read_b128 v[{228+4*q}:{231+4*q}], v1 offset:{q*1024}")
e("v_lshlrev_b32 v5, 1, v0", "s_waitcnt lgkmcnt(2)")
for q in range(4): e(f"v_pk_add_f32 v[{KV+2*q}:{KV+1+2*q}], v[{KV+2*q}:{KV+1+2*q}], v[{228+2*q}:{229+2*q}]")
for p in range(4): e(f"v_cvt_pk_bf16_f32 v{PK+p}, v{KV+2*p}, v{KV+1+2*p}")
e(f"buffer_store_dwordx4 v[{PK}:{PK+3}], v2, s[16:19], s31 offen sc1", "s_waitcnt lgkmcnt(0)")
for q in range(4): e(f"v_pk_add_f32 v[{Z+2*q}:{Z+1+2*q}], v[{Z+2*q}:{Z+1+2*q}], v[{236+2*q}:{237+2*q}]")
e("s_mov_b32 exec_lo, 0x00010001", "s_mov_b32 exec_hi, 0x00010001",
  f"buffer_store_dwordx4 v[{Z}:{Z+3}], v5, s[16:19], s30 offen sc1", f"buffer_store_dwordx4 v[{Z+4}:{Z+7}], v5, s[16:19], s30 offen offset:16 sc1", "s_mov_b64 exec, -1")
a.lab("L_kvflag")
stamp("kvex")
for r in range(4): e(f"ds_read_b32 v{16+2*r}, v6 offset:{64*r}", f"ds_read_b32 v{EV[r]}, v6 offset:{512+64*r}")
for c in range(2): e(f"ds_read_b128 v[{24+4*c}:{27+4*c}], v7 offset:{64*c}")
QF = P("QF", 1)
PQ = 32
def qblock(r):
    inv = f"v[{16+2*r}:{17+2*r}]"; nb = f"v[{EV[r]}:{EV[r]+1}]"
    sl = SH; sl3 = "op_sel_hi:[1,0,1]"
    for c in range(2):
        d = ACC + (c*4+r)*4
        e(f"v_pk_mul_f32 v[52:53], v[{24+4*c}:{25+4*c}], {nb} {sl}", f"v_pk_mul_f32 v[54:55], v[{26+4*c}:{27+4*c}], {nb} {sl}",
          f"v_pk_fma_f32 v[{d}:{d+1}], v[{d}:{d+1}], {inv}, v[52:53] {sl3}", f"v_pk_fma_f32 v[{d+2}:{d+3}], v[{d+2}:{d+3}], {inv}, v[54:55] {sl3}")
        phi2(d, PQ+4*r+2*c, 56); phi2(d+2, PQ+4*r+2*c+1, 58)
e("s_waitcnt lgkmcnt(0)")
for r in range(QF): qblock(r)
e("v_mov_b32 v5, s52", "s_mov_b64 exec, 1", "s_waitcnt vmcnt(0)", "buffer_store_dword v5, v2, s[16:19], s32 offen sc1", "ds_write_b32 v4, v10 offset:36", "s_mov_b64 exec, -1")
stamp("kvpub")
for r in range(QF, 4): qblock(r)
stamp("qdone")
e("s_cmp_lg_u32 s25, 0", "s_cbranch_scc1 L_kvw", "v_lshlrev_b32 v5, 2, v0", "s_lshl_b32 s30, s23, 8", f"s_add_u32 s30, s30, {hex(WS_KF)}")
poll(6, 5, 30, 0xffffffff, 0xffffffff, sleep=P("SLK", 2))
e("v_mov_b32 v5, 1", "ds_write_b32 v4, v5 offset:32", "s_branch L_kvgo")
a.lab("L_kvw")
lds_wait(5, 4, 32, 1)
a.lab("L_kvgo")
stamp("kvpoll")
e("v_lshlrev_b32 v5, 5, v0", "s_lshl_b32 s30, s38, 11", f"s_add_u32 s30, s30, {hex(WS_ZP)}",
  "buffer_load_dwordx4 v[16:19], v5, s[16:19], s30 offen sc1", "buffer_load_dwordx4 v[20:23], v5, s[16:19], s30 offen offset:16 sc1",
  "s_lshl_b32 s30, s38, 15", "s_lshl_b32 s31, s26, 14", "s_add_u32 s30, s30, s31", f"s_add_u32 s30, s30, {hex(WS_KVP)}")
for p in range(8):
    e(f"s_add_u32 s31, s22, {p}", "s_and_b32 s31, s31, 7", "s_lshl_b32 s31, s31, 11", "s_add_u32 s31, s31, s30",
      f"buffer_load_dwordx4 v[{64+8*p}:{67+8*p}], v2, s[16:19], s31 offen sc1",
      f"buffer_load_dwordx4 v[{68+8*p}:{71+8*p}], v2, s[16:19], s31 offen offset:1024 sc1")
e("v_mov_b32 v60, 0x3f80", "v_mov_b32 v61, 0x3f800000")
for c in range(16): e(f"v_mov_b32 v{128+c}, 0")
e("v_lshrrev_b32 v6, 4, v0", "v_lshlrev_b32 v6, 2, v6", "s_waitcnt vmcnt(16)")
for ctrl in ("row_ror:4", "row_ror:8"):
    for c in range(8): e(f"v_add_f32_dpp v{16+c}, v{16+c}, v{16+c} {ctrl} row_mask:0xf bank_mask:0xf")
for sw in ("v_permlane16_swap_b32", "v_permlane32_swap_b32"):
    for c in range(8): e(f"v_mov_b32 v{24+c}, v{16+c}")
    for c in range(8): e(f"{sw} v{16+c}, v{24+c}")
    for c in range(8): e(f"v_add_f32 v{16+c}, v{16+c}, v{24+c}")
for p in range(4): e(f"v_cvt_pk_bf16_f32 v{16+p}, v{16+2*p}, v{17+2*p}")
for p in range(4): e(f"ds_bpermute_b32 v{24+p}, v6, v{16+p}")
for p in range(8):
    e(f"s_waitcnt vmcnt({2*(7-p)})")
    for c in range(8): e(f"v_dot2_f32_bf16 v{128+2*c}, v{64+8*p+c}, v60, v{128+2*c}", f"v_dot2_f32_bf16 v{129+2*c}, v{64+8*p+c}, v61, v{129+2*c}")
stamp("paysum")
e("s_lshl_b32 s30, s25, 12", f"s_add_u32 s30, s30, {L_EX2}", "v_add_u32 v3, s30, v2", "v_xor_b32 v7, 8192, v3", "v_mov_b32 v5, 1")
for q in range(4): e(f"ds_write_b128 v3, v[{128+4*q}:{131+4*q}] offset:{q*1024}")
e("ds_write_b32 v9, v5 offset:16")
lds_wait(5, 8, 16)
for q in range(4): e(f"ds_read_b128 v[{64+4*q}:{67+4*q}], v7 offset:{q*1024}")
e("s_lshl_b32 s30, s22, 3", "s_lshl_b32 s31, s26, 2", "s_add_u32 s30, s30, s31", "s_lshl_b32 s30, s30, 5", "s_add_u32 s30, s30, s38", "s_lshl_b32 s30, s30, 10")
for q in range(8):
    if q % 2 == 0: e(f"s_waitcnt lgkmcnt({3 - q//2})")
    e(f"v_pk_add_f32 v[{128+2*q}:{129+2*q}], v[{128+2*q}:{129+2*q}], v[{64+2*q}:{65+2*q}]")
for p in range(8): e(f"v_cvt_pk_bf16_f32 v{16+p}, v{128+2*p}, v{129+2*p}")
for r in range(4):
    n = 64 + 12*r
    e(f"v_mfma_f32_16x16x32_bf16 v[{n+8}:{n+11}], v[24:27], v[{PQ+4*r}:{PQ+4*r+3}], 0")
for r in range(4):
    n = 64 + 12*r
    e(f"v_mfma_f32_16x16x32_bf16 v[{n}:{n+3}], v[16:19], v[{PQ+4*r}:{PQ+4*r+3}], 0",
      f"v_mfma_f32_16x16x32_bf16 v[{n+4}:{n+7}], v[20:23], v[{PQ+4*r}:{PQ+4*r+3}], 0")
for r in range(4): e(f"v_add_f32 v{64+12*r+8}, s36, v{64+12*r+8}")
for r in range(4): e(f"v_rcp_f32 v{64+12*r+8}, v{64+12*r+8}")
for r in range(4):
    n = 64 + 12*r
    for q in range(4): e(f"v_pk_mul_f32 v[{n+2*q}:{n+2*q+1}], v[{n+2*q}:{n+2*q+1}], v[{n+8}:{n+9}] op_sel_hi:[1,0]")
    for q in range(4): e(f"v_cvt_pk_bf16_f32 v{128+4*r+q}, v{n+2*q}, v{n+2*q+1}")
    e(f"buffer_store_dwordx4 v[{128+4*r}:{131+4*r}], v2, s[16:19], s30 offen sc1", "s_add_u32 s30, s30, 32768")
stamp("ostore")
e("s_lshl_b32 s30, s22, 8", "s_lshl_b32 s31, s23, 4", "s_add_u32 s30, s30, s31", "s_lshl_b32 s31, s25, 2", "s_add_u32 s30, s30, s31", f"s_add_u32 s30, s30, {hex(WS_OFL)}",
  "v_mov_b32 v5, s52", "s_mov_b64 exec, 1", "s_waitcnt vmcnt(0)", "buffer_store_dword v5, v2, s[16:19], s30 offen sc1", "ds_write_b32 v4, v10 offset:40", "s_mov_b64 exec, -1")
stamp("opub")
e("s_branch L_phase2")

a.lab("L_loader")
e("s_sub_u32 s26, s25, 4")
e("s_lshl_b32 s30, s22, 7", "s_lshl_b32 s31, s26, 6", "s_add_u32 s30, s30, s31",
  "v_lshrrev_b32 v1, 3, v0", "v_add_u32 v3, s30, v1", "v_lshlrev_b32 v3, 11, v3",
  "v_and_b32 v4, 7, v0", "v_lshrrev_b32 v5, 4, v0", "v_xor_b32 v6, v4, v5", "v_lshlrev_b32 v6, 4, v6",
  "v_add_u32 v16, v3, v6", "v_xor_b32 v17, 64, v16", "v_add_u32 v17, 16384, v17")
for q in range(2, 8): e(f"v_add_u32 v{16+q}, {32768*(q>>1)}, v{16+(q&1)}")
e("s_lshl_b32 s30, s26, 5", "v_add_u32 v3, s30, v1", "v_mul_u32_u24 v3, 6144, v3",
  "v_and_b32 v6, 1, v5", "v_lshlrev_b32 v6, 2, v6", "v_xor_b32 v6, v4, v6", "v_lshlrev_b32 v6, 4, v6",
  "v_add_u32 v3, v3, v6", "s_lshl_b32 s30, s23, 7", "v_add_u32 v24, s30, v3", "v_xor_b32 v25, 32, v24", "v_add_u32 v25, 49152, v25")
for sec in range(3):
    for p in range(4):
        if sec or p >= 2: e(f"v_add_u32 v{24+sec*4+p}, {sec*2048 + (p>>1)*98304}, v{24+(p&1)}")
e("s_lshl_b32 s32, s26, 13", "s_lshl_b32 s33, s26, 12", "s_add_u32 s33, s33, 16384", "s_mov_b32 s34, 0", "s_mov_b32 s35, 0", "s_mov_b32 s36, 0")
def issue():
    e("s_add_u32 s37, s36, s32", "s_add_u32 s38, s36, s33")
    for q in range(8): e(f"s_add_u32 m0, s37, {q*1024}", "s_nop 0", f"buffer_load_dwordx4 v{16+q}, s[8:11], s34 offen lds")
    for sec in range(3):
        for p in range(4): e(f"s_add_u32 m0, s38, {sec*8192 + p*1024}", "s_nop 0", f"buffer_load_dwordx4 v{24+sec*4+p}, s[12:15], s35 offen lds")
    e("s_add_u32 s34, s34, 128", "s_add_u32 s35, s35, 393216", f"s_add_u32 s36, s36, {STAGE}", f"s_cmp_eq_u32 s36, {3*STAGE}", "s_cselect_b32 s36, 0, s36")
e("s_mov_b32 s31, 0")
a.lab("L_lloop")
e("s_cmp_lt_u32 s31, 2", "s_cbranch_scc1 L_lissue", "s_waitcnt vmcnt(20)", "s_barrier")
a.lab("L_lissue")
issue()
e("s_add_u32 s31, s31, 1", "s_cmp_lt_u32 s31, 16", "s_cbranch_scc1 L_lloop")
a.srd(40, 84, 0x200000)
e("v_lshlrev_b32 v3, 11, v1", "v_lshlrev_b32 v6, 1, v5", "v_xor_b32 v6, v4, v6", "v_lshlrev_b32 v6, 4, v6", "v_add_u32 v3, v3, v6",
  "s_lshl_b32 s30, s29, 7", "v_add_u32 v40, s30, v3", "s_and_b32 s34, s28, 3", "s_lshl_b32 s34, s34, 1", "s_mov_b32 s31, 0")
e("s_waitcnt vmcnt(20)", "s_barrier", "s_waitcnt vmcnt(0)", "s_barrier", "s_barrier")
WOT = P("WOT", 0)
if WOT:
    e(f"v_mov_b32 v41, {L_FLG}")
    lds_wait(42, 41, {1: 36, 2: 32}[WOT], 2)
stamp("wostart")
a.lab("L_woloop")
e("s_and_b32 s35, s34, 7", "s_lshl_b32 s36, s26, 3", "s_add_u32 s35, s35, s36", "s_lshl_b32 s36, s35, 13", "s_lshl_b32 s35, s35, 17")
for q in range(8): e(f"s_add_u32 m0, s36, {q*1024}", "s_nop 0", "buffer_load_dwordx4 v40, s[40:43], s35 offen lds", "s_add_u32 s35, s35, 16384")
e("s_waitcnt vmcnt(40)", "s_add_u32 s34, s34, 1", "s_add_u32 s31, s31, 1", "s_cmp_lt_u32 s31, 8", "s_cbranch_scc1 L_woloop")
e("s_waitcnt vmcnt(0) lgkmcnt(0)")
stamp("wodone")
e("s_add_u32 s52, s52, 1", "s_branch L_phase2")

a.lab("L_service")
e("s_sub_u32 s26, s25, 6")
if P("CPF", 1):
    e("s_getpc_b64 s[30:31]")
    a.lab("L_pc")
    e(f"s_sub_u32 s30, s30, L_pc-{K}", "s_subb_u32 s31, s31, 0", "s_lshl_b32 s32, s21, 1", "s_add_u32 s32, s32, s26", "s_lshl_b32 s32, s32, 9",
      "v_lshlrev_b32 v3, 7, v0", "v_add_u32 v3, s32, v3", f"v_min_u32 v3, L_end-{K}, v3", "s_mov_b64 exec, 15", "global_load_dword v245, v3, s[30:31]", "s_mov_b64 exec, -1")
e("s_cmp_eq_u32 s26, 0", "s_cselect_b32 s40, s74, s76", "s_cselect_b32 s41, s75, s77", "s_and_b32 s41, s41, 0xffff",
  "s_cmp_lt_u32 s2, 224", "s_cselect_b32 s42, 7340032, 0", "s_mov_b32 s43, 0x20000")
a.srd(44, 78, 7340032)
if P("NOMOE", 0): e("s_mov_b32 s42, 0", "s_mov_b32 s46, 0")
e("s_mul_i32 s48, s2, 1171", "s_lshr_b32 s48, s48, 16", "s_mul_i32 s49, s48, 56", "s_sub_u32 s49, s2, s49",
  "s_and_b32 s50, s2, 15", "s_lshr_b32 s51, s2, 4")
e("v_lshrrev_b32 v1, 3, v0", "v_and_b32 v3, 7, v0", "v_lshlrev_b32 v3, 4, v3",
  "v_mul_u32_u24 v16, 7168, v1", "v_add_u32 v16, v16, v3",
  "v_lshlrev_b32 v17, 11, v1", "v_add_u32 v17, v17, v3",
  "s_mul_i32 s53, s48, 1835008", "s_lshl_b32 s30, s49, 7", "s_add_u32 s53, s53, s30",
  f"v_mov_b32 v4, {L_FLG}", "v_mov_b32 v8, 0", "v_mov_b32 v9, 0", "v_mov_b32 v10, 0", "v_mov_b32 v11, 0",
  "ds_write_b128 v4, v[8:11]", "ds_write_b128 v4, v[8:11] offset:16", "ds_write_b128 v4, v[8:11] offset:32", "s_waitcnt lgkmcnt(0)", "s_add_u32 s52, s52, 1")
WG, WD, XS, AC = 60, 188, 28, 20
def burst(n0):
    for n in range(n0, n0+16): e(f"buffer_load_dwordx4 v[{WG+4*n}:{WG+4*n+3}], v16, s[40:43], s53 offen {WNT}", "s_add_u32 s53, s53, 57344")
def gemv(base, cnt):
    for c in range(8): e(f"v_mov_b32 v{AC+c}, 0")
    for n in range(cnt):
        e(f"v_lshlrev_b32 v{18+(n&1)}, 16, v{XS+n}")
        for c in range(4):
            e(f"v_dot2_f32_bf16 v{AC+2*c}, v{base+4*n+c}, v{XS+n}, v{AC+2*c}", f"v_dot2_f32_bf16 v{AC+1+2*c}, v{base+4*n+c}, v{18+(n&1)}, v{AC+1+2*c}")
    e("s_nop 2")
    for c in range(4): e(f"v_permlane32_swap_b32 v{AC+c}, v{AC+4+c}")
    e("s_nop 0")
    for c in range(4): e(f"v_add_f32 v{AC+c}, v{AC+c}, v{AC+4+c}")
    e("s_nop 1")
    for c in range(2): e(f"v_permlane16_swap_b32 v{AC+c}, v{AC+2+c}")
    e("s_nop 0")
    for c in range(2): e(f"v_add_f32 v{AC+c}, v{AC+c}, v{AC+2+c}")
    e("s_nop 1")
    for c in range(2): e(f"v_add_f32_dpp v{AC+c}, v{AC+c}, v{AC+c} row_ror:8 row_mask:0xf bank_mask:0xf")
    e("v_and_b32 v4, 7, v0", "v_lshlrev_b32 v4, 5, v4", "v_lshrrev_b32 v5, 5, v0", "v_lshlrev_b32 v5, 4, v5", "v_add_u32 v4, v4, v5",
      "v_bfe_u32 v5, v0, 4, 1", "v_lshlrev_b32 v5, 3, v5", "v_add_u32 v4, v4, v5")
def act0():
    e("s_mul_i32 s30, s26, 48", "v_add_u32 v4, s30, v0", "v_lshlrev_b32 v5, 3, v4", f"v_add_u32 v4, {L_CST}, v5")
    for q in range(8): e(f"ds_read_b64 v[{20+2*q}:{21+2*q}], v4 offset:{(q>>1)*1536 + (q&1)*768}")
    e(f"v_mov_b32 v6, {L_KEY}", "ds_read_b128 v[40:43], v6", "ds_read_b128 v[44:47], v6 offset:16",
      "s_mul_i32 s30, s22, 12288", "s_mul_i32 s31, s23, 768", "s_add_u32 s30, s30, s31", f"s_add_u32 s30, s30, {hex(WS_CSP)}", "s_waitcnt lgkmcnt(0)")
    for q in range(1, 8): e(f"v_pk_add_f32 v[20:21], v[20:21], v[{20+2*q}:{21+2*q}]")
    e("v_max3_u32 v40, v40, v41, v42", "v_max3_u32 v40, v40, v43, v44", "v_max3_u32 v40, v40, v45, v46", "v_max_u32 v40, v40, v47", "v_mov_b32 v41, s52",
      "s_mov_b32 exec_hi, 0xffff", "buffer_store_dwordx2 v[20:21], v5, s[16:19], s30 offen sc1", "s_mov_b64 exec, -1")
def act1(): e("s_waitcnt vmcnt(0)")
def act2():
    l = a.newlab()
    e("s_cmp_lg_u32 s26, 0", f"s_cbranch_scc1 {l}", "s_lshl_b32 s30, s2, 3", f"s_add_u32 s30, s30, {hex(WS_E1T)}", "s_mov_b64 exec, 1",
      "buffer_store_dwordx2 v[40:41], v2, s[16:19], s30 offen sc1", "s_mov_b64 exec, -1")
    a.lab(l)
def e1_issue():
    e("v_lshlrev_b32 v19, 5, v0", f"s_mov_b32 s54, {hex(WS_E1T)}",
      "buffer_load_dwordx4 v[40:43], v19, s[16:19], s54 offen sc1", "buffer_load_dwordx4 v[44:47], v19, s[16:19], s54 offen offset:16 sc1")
def rg(n): return WD + 4*n
def e1_check():
    lp, ld = a.newlab(), a.newlab()
    e(f"s_mov_b32 s39, {SPIN}")
    a.lab(lp)
    e("s_waitcnt vmcnt(0)", "v_xor_b32 v4, s52, v41", "v_xor_b32 v5, s52, v43", "v_xor_b32 v6, s52, v45", "v_xor_b32 v7, s52, v47",
      "v_or_b32 v4, v4, v5", "v_or3_b32 v4, v4, v6, v7", "v_cmp_ne_u32 vcc, 0, v4", f"s_cbranch_vccz {ld}",
      "buffer_load_dwordx4 v[40:43], v19, s[16:19], s54 offen sc1", "buffer_load_dwordx4 v[44:47], v19, s[16:19], s54 offen offset:16 sc1",
      "s_sub_u32 s39, s39, 1", f"s_cbranch_scc0 {lp}")
    a.lab(ld)
    e("s_waitcnt vmcnt(0)", "v_max_u32 v40, v40, v42", "v_max3_u32 v40, v40, v44, v46")
    a.wave_allreduce([40], [41], op="v_max_u32")
    e("s_nop 0", "v_readfirstlane_b32 s55, v40", "s_nop 3", "s_and_b32 s55, s55, 0x7ff", "s_sub_u32 s55, 2047, s55")
    l7, lj = a.newlab(), a.newlab()
    e("s_cmp_lg_u32 s26, 0", f"s_cbranch_scc1 {l7}")
    e("s_lshl_b32 s30, s22, 11", f"s_add_u32 s30, s30, {hex(WS_ST)}", "s_lshl_b32 s31, s28, 11", f"s_add_u32 s31, s31, {hex(WS_ST)}",
      "buffer_load_dwordx4 v[40:43], v2, s[16:19], s30 offen sc1", "buffer_load_dwordx4 v[44:47], v2, s[16:19], s30 offen offset:1024 sc1",
      "buffer_load_dwordx4 v[48:51], v2, s[16:19], s31 offen sc1", "buffer_load_dwordx4 v[52:55], v2, s[16:19], s31 offen offset:1024 sc1",
      "s_lshl_b32 s30, s55, 4", f"s_add_u32 s30, s30, {hex(WS_ST)}", "v_mov_b32 v4, 0", "buffer_load_dwordx4 v[56:59], v4, s[16:19], s30 offen sc1",
      "s_lshl_b32 s30, s55, 11", "s_lshl_b32 s31, s48, 9", "s_add_u32 s30, s30, s31", "v_lshlrev_b32 v5, 3, v0", "buffer_load_dwordx2 v[20:21], v5, s[8:11], s30 offen",
      "s_cmp_lg_u32 s2, 0", f"s_cbranch_scc1 {lj}", f"s_mov_b32 s30, {hex(WS_EP)}", "v_mov_b32 v6, s52", "s_mov_b64 exec, 1",
      "buffer_store_dword v6, v4, s[16:19], s30 offen sc1", "s_mov_b64 exec, -1", f"s_branch {lj}")
    a.lab(l7)
    e("v_lshrrev_b32 v4, 4, v0", "v_mul_u32_u24 v4, 12288, v4", "v_and_b32 v5, 15, v0", "v_lshlrev_b32 v5, 4, v5", "v_add_u32 v4, v4, v5",
      "s_lshl_b32 s30, s23, 8", f"s_add_u32 s30, s30, {hex(WS_CSP)}")
    for n in range(12):
        e(f"s_add_u32 s31, s30, {(n>>2)*4096 + (n&3)*49152}", f"buffer_load_dwordx4 v[{rg(n)}:{rg(n)+3}], v4, s[16:19], s31 offen sc1")
    a.lab(lj)
def both(f6, f7):
    l7, lj = a.newlab(), a.newlab()
    e("s_cmp_lg_u32 s26, 0", f"s_cbranch_scc1 {l7}"); f6(); e(f"s_branch {lj}"); a.lab(l7); f7(); a.lab(lj)
regs7 = [rg(4*sec)+c for sec in range(3) for c in range(4)]
def u6a():
    e("v_mul_f32 v40, v40, v41", "v_mul_f32 v44, v44, v45", "v_lshlrev_b32 v4, 2, v0", f"v_add_u32 v4, {L_INV}, v4",
      "ds_write_b32 v4, v41", "ds_write_b32 v4, v45 offset:256", "ds_write_b32 v4, v40 offset:512", "ds_write_b32 v4, v44 offset:768",
      "v_lshlrev_b32 v4, 3, v0", f"v_add_u32 v4, {L_ST2}, v4", "ds_write_b64 v4, v[48:49]", "ds_write_b64 v4, v[52:53] offset:512")
def u6b():
    e("v_lshlrev_b32 v8, 16, v20", "v_and_b32 v9, 0xffff0000, v20", "v_lshlrev_b32 v10, 16, v21", "v_and_b32 v11, 0xffff0000, v21",
      "v_add_f32 v8, v8, v56", "v_add_f32 v9, v9, v56", "v_add_f32 v10, v10, v56", "v_add_f32 v11, v11, v56",
      "v_cvt_pk_bf16_f32 v20, v8, v9", "v_cvt_pk_bf16_f32 v21, v10, v11",
      "v_lshlrev_b32 v8, 16, v20", "v_and_b32 v9, 0xffff0000, v20", "v_lshlrev_b32 v10, 16, v21", "v_and_b32 v11, 0xffff0000, v21",
      "v_mul_f32 v8, v8, v57", "v_mul_f32 v9, v9, v57", "v_mul_f32 v10, v10, v57", "v_mul_f32 v11, v11, v57",
      "v_cvt_pk_bf16_f32 v20, v8, v9", "v_cvt_pk_bf16_f32 v21, v10, v11",
      "v_and_b32 v8, 0xffff, v20", "v_lshrrev_b32 v9, 16, v20", "v_and_b32 v10, 0xffff, v21", "v_lshrrev_b32 v11, 16, v21",
      "v_and_b32 v4, 1, v0", "v_lshlrev_b32 v4, 9, v4", "v_lshrrev_b32 v5, 1, v0", "v_lshlrev_b32 v5, 2, v5", "v_add_u32 v4, v4, v5", f"v_add_u32 v4, {L_XS}, v4",
      "ds_write_b32 v4, v8", "ds_write_b32 v4, v9 offset:128", "ds_write_b32 v4, v10 offset:256", "ds_write_b32 v4, v11 offset:384")
def u6c():
    bf16r(58); sigmoid(58); bf16r(58)
    e("v_mov_b32 v59, s55", f"v_mov_b32 v4, {L_MISC}", "ds_write_b64 v4, v[58:59]")
def u7a():
    for sec in range(3):
        for n in range(1, 4):
            for c in range(4): e(f"v_add_f32 v{rg(4*sec)+c}, v{rg(4*sec)+c}, v{rg(4*sec+n)+c}")
def u7s(sw):
    for k, r in enumerate(regs7): e(f"v_mov_b32 v{20+k}, v{r}")
    for k, r in enumerate(regs7): e(f"{sw} v{r}, v{20+k}")
    for k, r in enumerate(regs7): e(f"v_add_f32 v{r}, v{r}, v{20+k}")
def u7c():
    u7s("v_permlane32_swap_b32")
    e(f"v_add_u32 v5, {L_CS}, v5")
    for sec in range(3): e(f"ds_write_b128 v5, v[{rg(4*sec)}:{rg(4*sec)+3}] offset:{256*sec}")
def e1_u1(): e("s_waitcnt vmcnt(0)"); both(u6a, u7a)
def e1_u2(): both(u6b, lambda: u7s("v_permlane16_swap_b32"))
def e1_u3(): both(u6c, u7c); e("s_waitcnt lgkmcnt(0)")
def xs_read():
    e("v_lshlrev_b32 v4, 7, v1", f"v_add_u32 v4, {L_XS}, v4")
    for q in range(8): e(f"ds_read_b128 v[{XS+4*q}:{XS+4*q+3}], v4 offset:{16*q}")
    e("s_waitcnt lgkmcnt(0)")
def down_loads():
    e("s_lshl_b32 s30, s27, 11", "s_lshl_b32 s31, s50, 7", "s_add_u32 s30, s30, s31")
    for n in range(14): e(f"buffer_load_dwordx4 v[{WD+4*n}:{WD+4*n+3}], v17, s[44:47], s30 offen {WNT}", "s_add_u32 s30, s30, 16384")
def wo_pf():
    e("s_lshl_b32 s30, s21, 7", "s_lshl_b32 s31, s26, 6", "s_add_u32 s30, s30, s31", "v_add_u32 v4, s30, v0",
      "v_and_b32 v5, 7, v4", "v_lshlrev_b32 v5, 7, v5", "v_lshrrev_b32 v4, 3, v4", "v_lshlrev_b32 v4, 11, v4", "v_add_u32 v4, v4, v5",
      "s_and_b32 s30, s20, 1", "s_lshl_b32 s30, s30, 10", "buffer_load_dword v244, v4, s[56:59], s30 offen")
    if P("WO2", 0): e("buffer_load_dword v244, v4, s[56:59], s30 offen offset:64")
    e("s_add_u32 s30, s30, 0x100000", "buffer_load_dword v245, v4, s[56:59], s30 offen")
    if P("WO2", 0): e("buffer_load_dword v245, v4, s[56:59], s30 offen offset:64")
a.srd(56, 84, 0x200000)
e("s_mul_i32 s27, s51, 224", "s_mul_i32 s30, s26, 112", "s_add_u32 s27, s27, s30")
SG = P("SG", 2)
e("s_lshr_b32 s60, s2, 3", f"s_mul_i32 s60, s60, {SG}", "s_lshr_b32 s60, s60, 5")
fixed = {0: [act0], 1: [act1], 2: [act2], SE: [e1_issue], SE+1: [e1_check], SE+3: [e1_u1], SE+4: [e1_u2], SE+5: [e1_u3], SE+6: [xs_read]}
T0 = P("T0", SE+3)
TS = [int(x) for x in os.environ.get("TS", f"{T0},{T0+SG},{T0+2*SG},{13}").split(",")]
stag = [(TS[0], lambda: burst(0)), (TS[1], lambda: burst(16)), (TS[2], down_loads), (TS[3], wo_pf)]
SST = P("SST", 0)
for t in range(17):
    e("s_barrier")
    if SST and t >= 2:
        r = 88 + 2*(t-2) if t < 9 else 62 + 2*(t-9)
        if t < 14: e(f"s_memrealtime s[{r}:{r+1}]")
    for f in fixed.get(t, []): f()
    for k, (t0, f) in enumerate(stag):
        if t0 <= t < t0 + SG:
            if SG == 1: f(); continue
            tgt = f"L_stg{k}"
            l = a.newlab()
            e(f"s_cmp_lg_u32 s60, {t - t0}", f"s_cbranch_scc1 {l}", f"s_getpc_b64 s[36:37]")
            lp = a.newlab(); a.lab(lp)
            e(f"s_add_u32 s36, s36, {tgt}-{lp}", "s_addc_u32 s37, s37, 0", "s_swappc_b64 s[34:35], s[36:37]")
            a.lab(l)
if SST:
    e("s_cmp_lg_u32 s25, 6", "s_cbranch_scc1 L_nosst", "s_waitcnt lgkmcnt(0)", "s_mul_i32 s30, s2, 128", "s_add_u32 s30, s30, 0x0F100000")
    e("v_mov_b32 v4, 0")
    for g in range(7):
        src = [86+4*g+q if g < 4 else 62+4*(g-4)+q for q in range(4)]
        for q in range(4): e(f"v_mov_b32 v{8+q}, s{src[q]}")
        e("s_mov_b64 exec, 1", f"buffer_store_dwordx4 v[8:11], v4, s[16:19], s30 offen offset:{16*g}", "s_mov_b64 exec, -1", "s_waitcnt vmcnt(0)")
    a.lab("L_nosst")
stamp("svc16")
e(f"v_mov_b32 v3, {L_FLG}")
for k, (t0, f) in enumerate(stag):
    if t0 == 17: lds_wait(4, 3, 36, 2); f()
e("s_waitcnt vmcnt(0)")
if P("DBGX", 0):
    e("s_lshl_b32 s30, s2, 14", "s_lshl_b32 s31, s26, 13", "s_add_u32 s30, s30, s31", "s_add_u32 s30, s30, 0x600000")
    for q in range(8): e(f"buffer_store_dwordx4 v[{XS+4*q}:{XS+4*q+3}], v2, s[16:19], s30 offen", "s_add_u32 s30, s30, 1024")
    e("s_waitcnt vmcnt(0)")
gemv(WG, 32)
lg = a.newlab()
e("s_cmp_ge_u32 s2, 224", f"s_cbranch_scc1 {lg}",
  "s_mul_i32 s30, s48, 28672", "s_mul_i32 s31, s26, 14336", "s_add_u32 s30, s30, s31", "s_lshl_b32 s31, s49, 8", "s_add_u32 s30, s30, s31", f"s_add_u32 s30, s30, {hex(WS_GU)}",
  "s_mov_b32 exec_lo, 0x00ff00ff", "s_mov_b32 exec_hi, 0x00ff00ff", f"buffer_store_dwordx2 v[{AC}:{AC+1}], v4, s[16:19], s30 offen sc1",
  "s_lshl_b32 s30, s49, 5", "s_lshl_b32 s31, s48, 3", "s_add_u32 s30, s30, s31", "s_lshl_b32 s31, s26, 2", "s_add_u32 s30, s30, s31", f"s_add_u32 s30, s30, {hex(WS_GUF)}",
  "v_mov_b32 v5, s52", "s_mov_b64 exec, 1", "s_waitcnt vmcnt(0)", "buffer_store_dword v5, v2, s[16:19], s30 offen sc1", "s_mov_b64 exec, -1")
a.lab(lg)
stamp("gupub")
for k, (t0, f) in enumerate(stag):
    if t0 == 18: f()
    if t0 == 19: lds_wait(4, 3, 40, 2); f()
e("s_mul_i32 s30, s51, 7", "s_lshr_b32 s30, s30, 1", "s_lshl_b32 s30, s30, 5", f"s_add_u32 s30, s30, {hex(WS_GUF)}", "v_lshlrev_b32 v5, 2, v0")
poll(6, 5, 30, 0xffffffff, sleep=P('SLG', 8))
stamp("gupoll")
e("v_min_u32 v4, 55, v0", "v_lshlrev_b32 v4, 3, v4", "s_lshl_b32 s30, s27, 2", f"s_add_u32 s30, s30, {hex(WS_GU)}")
for s in range(8): e(f"buffer_load_dwordx2 v[{40+2*s}:{41+2*s}], v4, s[16:19], s30 offen sc1", "s_add_u32 s30, s30, 14336")
e("s_waitcnt vmcnt(0)",
  "v_pk_add_f32 v[40:41], v[40:41], v[44:45]", "v_pk_add_f32 v[42:43], v[42:43], v[46:47]", "v_pk_add_f32 v[48:49], v[48:49], v[52:53]", "v_pk_add_f32 v[50:51], v[50:51], v[54:55]",
  "v_pk_add_f32 v[40:41], v[40:41], v[48:49]", "v_pk_add_f32 v[42:43], v[42:43], v[50:51]")
for v in (40, 41, 42, 43): bf16r(v)
for v in (40, 41):
    e(f"v_mov_b32 v{v+4}, v{v}"); sigmoid(v+4); e(f"v_mul_f32 v{v}, v{v}, v{v+4}"); bf16r(v)
e("v_pk_mul_f32 v[40:41], v[40:41], v[42:43]", "v_cvt_pk_bf16_f32 v40, v40, v41", "v_lshrrev_b32 v41, 16, v40", "v_and_b32 v40, 0xffff, v40",
  "v_and_b32 v4, 3, v0", "v_lshlrev_b32 v4, 7, v4", "v_lshrrev_b32 v5, 2, v0", "v_lshlrev_b32 v5, 2, v5", "v_add_u32 v4, v4, v5",
  "s_lshl_b32 s30, s26, 9", f"s_add_u32 s30, s30, {L_HS}", "v_add_u32 v4, s30, v4", "ds_write_b32 v4, v40", "ds_write_b32 v4, v41 offset:64",
  "v_lshrrev_b32 v1, 3, v0", "v_lshlrev_b32 v4, 6, v1", "v_add_u32 v4, s30, v4", "s_waitcnt lgkmcnt(0)")
for q in range(4): e(f"ds_read_b128 v[{XS+4*q}:{XS+4*q+3}], v4 offset:{16*q}")
e("s_waitcnt lgkmcnt(0)")
gemv(WD, 14)
e("s_lshl_b32 s31, s51, 1", "s_add_u32 s31, s31, s26", "s_lshl_b32 s30, s31, 12", "s_lshl_b32 s32, s50, 8", "s_add_u32 s30, s30, s32", f"s_add_u32 s30, s30, {hex(WS_YP)}",
  "s_mov_b32 exec_lo, 0x00ff00ff", "s_mov_b32 exec_hi, 0x00ff00ff", f"buffer_store_dwordx2 v[{AC}:{AC+1}], v4, s[16:19], s30 offen sc1",
  "s_lshl_b32 s30, s50, 7", "s_lshl_b32 s31, s31, 2", "s_add_u32 s30, s30, s31", f"s_add_u32 s30, s30, {hex(WS_YF)}",
  "v_mov_b32 v5, s52", "s_mov_b64 exec, 1", "s_waitcnt vmcnt(0)", "buffer_store_dword v5, v2, s[16:19], s30 offen sc1", "s_mov_b64 exec, -1")
if SG > 1:
    e("s_branch L_phase2")
    for k, (t0, f) in enumerate(stag):
        a.lab(f"L_stg{k}"); f(); e("s_setpc_b64 s[34:35]")

a.lab("L_phase2")
stamp("p2in")
a.srd(40, 80, 0x400000)
e("s_and_b32 s26, s25, 3", "s_lshr_b32 s27, s25, 2",
  "s_lshl_b32 s30, s28, 3", "s_lshl_b32 s31, s26, 1", "s_add_u32 s30, s30, s31", "s_lshl_b32 s33, s30, 15",
  "s_lshl_b32 s31, s27, 14", "s_add_u32 s33, s33, s31",
  "s_and_b32 s34, s29, 7", "s_lshl_b32 s34, s34, 1",
  "s_add_u32 s30, s30, s27", "s_lshl_b32 s30, s30, 4", "v_and_b32 v247, 15, v0", "v_add_u32 v246, s30, v247", "v_lshlrev_b32 v246, 11, v246",
  "v_bfe_u32 v1, v0, 4, 1", "v_lshlrev_b32 v1, 5, v1", "v_lshrrev_b32 v3, 5, v0", "v_lshlrev_b32 v3, 4, v3", "v_add_u32 v1, v1, v3",
  "s_lshl_b32 s31, s29, 7", "v_add3_u32 v246, v246, v1, s31",
  "buffer_load_dwordx4 v[248:251], v246, s[8:11], 0 offen", "buffer_load_dwordx4 v[252:255], v246, s[8:11], 0 offen offset:64",
  "s_and_b32 s30, s30, 127", "v_add_u32 v247, s30, v247",
  "v_lshlrev_b32 v4, 3, v247", f"v_add_u32 v4, {L_ST2}, v4", f"v_mov_b32 v5, {L_MISC}", "ds_read_b64 v[240:241], v4", "ds_read_b64 v[242:243], v5",
  "v_lshlrev_b32 v245, 1, v1",
  "s_lshl_b32 s31, s27, 15", "v_add_u32 v12, s31, v2", "v_xor_b32 v3, 32768, v12",
  "v_and_b32 v4, 60, v0", "v_lshlrev_b32 v4, 5, v4", "v_bfe_u32 v5, v0, 3, 2", "v_lshlrev_b32 v5, 5, v5", "v_add_u32 v4, v4, v5",
  "v_and_b32 v5, 3, v0", "v_lshlrev_b32 v5, 3, v5", "v_add_u32 v4, v4, v5", "s_lshl_b32 s31, s27, 16", "v_add_u32 v4, s31, v4",
  "v_xor_b32 v5, 32, v4", "v_xor_b32 v6, 64, v4", "v_xor_b32 v7, 96, v4",
  "s_waitcnt lgkmcnt(0)", "v_readfirstlane_b32 s55, v243", "v_mov_b32 v244, v241",
  "s_cmp_lg_u32 s25, 0", "s_cbranch_scc1 L_y1")
e("v_lshlrev_b32 v8, 2, v0", "s_lshl_b32 s30, s28, 8", f"s_add_u32 s30, s30, {hex(WS_OFL)}")
poll(9, 8, 30, 0xffffffff, 0xffffffff, sleep=P("SLO", 2))
a.lab("L_y1")
e(f"s_setprio {P('PR2A', 0)}", "s_cmp_lt_u32 s25, 4", "s_cbranch_scc1 L_y1b", f"s_setprio {P('PR2B', 0)}")
a.lab("L_y1b")
e("s_barrier")
stamp("y1")
PD = P("PD", 4)
def oload(n):
    return [f"s_add_u32 s36, s34, {n}", "s_and_b32 s36, s36, 15", "s_lshl_b32 s36, s36, 10", "s_add_u32 s36, s36, s33",
            f"buffer_load_dwordx4 v[{64+8*n}:{67+8*n}], v12, s[16:19], s36 offen {OFL}", f"buffer_load_dwordx4 v[{68+8*n}:{71+8*n}], v3, s[16:19], s36 offen {OFL}"]
for n in range(PD): e(*oload(n))
F2 = [192, 208, 224]
def reads2(n):
    L = [f"s_add_u32 s35, s34, {n}", "s_and_b32 s35, s35, 15", "s_lshl_b32 s35, s35, 12"]
    L += [f"v_add_u32 v{8+cb}, s35, v{4+cb}" for cb in range(4)]
    R = []
    for cb in range(4):
        f = F2[n % 3] + 4*cb
        R += [f"ds_read_b64_tr_b16 v[{f}:{f+1}], v{8+cb}", f"ds_read_b64_tr_b16 v[{f+2}:{f+3}], v{8+cb} offset:2048"]
    return L, R
for n in range(2):
    L, R = reads2(n); e(*L); e(*R)
for n in range(16):
    if n + PD < 16: e(*oload(n + PD))
    if n < 14:
        L, R = reads2(n+2); e(*L)
    else: R = []
    e(f"s_waitcnt vmcnt({2*min(PD, 15-n)}) lgkmcnt({8 if n < 15 else 0})")
    q = 0
    for cb in range(4):
        for rb in range(2):
            d = 16 + (rb*4+cb)*4; f = F2[n % 3] + 4*cb
            e(f"v_mfma_f32_16x16x32_bf16 v[{d}:{d+3}], v[{f}:{f+3}], v[{64+8*n+4*rb}:{67+8*n+4*rb}], " + ("0" if n == 0 else f"v[{d}:{d+3}]"))
            if q < len(R): e(R[q])
            q += 1
stamp("g2end")
e("s_lshl_b32 s30, s25, 12", f"s_add_u32 s30, s30, {S}", "v_add_u32 v4, s30, v2", "v_xor_b32 v5, 16384, v4",
  "s_lshr_b32 s30, s55, 7", "s_cmp_eq_u32 s30, s28", "s_cselect_b32 s56, 1, 0",
  "s_nop 1")
for cb in range(4): e(f"ds_write_b128 v4, v[{32+4*cb}:{35+4*cb}] offset:{cb*1024}")
e("s_cmp_eq_u32 s56, 1", "s_cbranch_scc1 L_sel")
def final(sel):
    if sel:
        l = a.newlab()
        e("s_cmp_lg_u32 s25, 6", f"s_cbranch_scc1 {l}", "v_lshlrev_b32 v8, 2, v0", "s_lshl_b32 s30, s29, 7", f"s_add_u32 s30, s30, {hex(WS_YF)}")
        poll(9, 8, 30, 0xffffffff)
        e("v_lshrrev_b32 v8, 4, v0", "v_lshlrev_b32 v8, 12, v8", "v_and_b32 v9, 15, v0", "v_lshlrev_b32 v9, 4, v9", "v_add_u32 v8, v8, v9",
          "s_lshl_b32 s30, s29, 8", f"s_add_u32 s30, s30, {hex(WS_YP)}")
        for n in range(8): e(f"buffer_load_dwordx4 v[{64+4*n}:{67+4*n}], v8, s[16:19], s30 offen sc1", "s_add_u32 s30, s30, 16384")
        e("s_waitcnt vmcnt(0)")
        for n in range(1, 8): e(f"v_pk_add_f32 v[64:65], v[64:65], v[{64+4*n}:{65+4*n}]", f"v_pk_add_f32 v[66:67], v[66:67], v[{66+4*n}:{67+4*n}]")
        for sw in ("v_permlane16_swap_b32", "v_permlane32_swap_b32"):
            for c in range(4): e(f"v_mov_b32 v{68+c}, v{64+c}")
            for c in range(4): e(f"{sw} v{64+c}, v{68+c}")
            for c in range(4): e(f"v_add_f32 v{64+c}, v{64+c}, v{68+c}")
        for c in range(4):
            bf16r(64+c); e(f"v_mul_f32 v{64+c}, v{64+c}, v242"); bf16r(64+c)
        a.lab(l)
    e("s_waitcnt lgkmcnt(0)", "s_barrier")
    stamp("y2")
    for cb in range(4): e(f"ds_read_b128 v[{32+4*cb}:{35+4*cb}], v5 offset:{cb*1024}")
    if sel:
        l = a.newlab()
        e("s_cmp_lg_u32 s25, 6", f"s_cbranch_scc1 {l}", "ds_write_b128 v9, v[64:67]")
        a.lab(l)
        e("s_waitcnt lgkmcnt(0)", "s_barrier")
        for pr in range(2): e(f"ds_read_b128 v[{96+8*pr}:{99+8*pr}], v245 offset:{128*pr}", f"ds_read_b128 v[{100+8*pr}:{103+8*pr}], v245 offset:{128*pr+16}")
        e("s_and_b32 s55, s55, 127", "v_cmp_eq_u32 vcc, s55, v247", "v_mov_b32 v14, 0", "v_mov_b32 v3, 1.0", "s_waitcnt lgkmcnt(0)", "v_cndmask_b32 v14, v14, v3, vcc")
    for cb in range(4):
        if not sel: e(f"s_waitcnt lgkmcnt({3-cb})")
        e(f"v_pk_add_f32 v[{16+4*cb}:{17+4*cb}], v[{16+4*cb}:{17+4*cb}], v[{32+4*cb}:{33+4*cb}]", f"v_pk_add_f32 v[{18+4*cb}:{19+4*cb}], v[{18+4*cb}:{19+4*cb}], v[{34+4*cb}:{35+4*cb}]",
          f"v_cvt_pk_bf16_f32 v{48+2*cb}, v{16+4*cb}, v{17+4*cb}", f"v_cvt_pk_bf16_f32 v{49+2*cb}, v{18+4*cb}, v{19+4*cb}")
    e("s_nop 1")
    for pr in range(2): e(f"v_permlane16_swap_b32 v{48+4*pr}, v{50+4*pr}", f"v_permlane16_swap_b32 v{49+4*pr}, v{51+4*pr}")
    e("s_waitcnt vmcnt(0)")
    for pr in range(2):
        for c in range(4):
            x = 248 + 4*pr + c; at = 48 + 4*pr + c
            e(f"v_lshlrev_b32 v8, 16, v{x}", f"v_and_b32 v9, 0xffff0000, v{x}",
              f"v_lshlrev_b32 v12, 16, v{at}", f"v_and_b32 v13, 0xffff0000, v{at}",
              "v_pk_add_f32 v[10:11], v[8:9], v[240:241] op_sel_hi:[1,0]",
              "v_pk_add_f32 v[8:9], v[8:9], v[12:13]",
              "v_cvt_pk_bf16_f32 v10, v10, v11", "v_cvt_pk_bf16_f32 v8, v8, v9",
              "v_and_b32 v11, 0xffff0000, v10", "v_lshlrev_b32 v10, 16, v10",
              "v_and_b32 v9, 0xffff0000, v8", "v_lshlrev_b32 v8, 16, v8",
              "v_pk_mul_f32 v[10:11], v[10:11], v[244:245] op_sel_hi:[1,0]",
              "v_cvt_pk_bf16_f32 v10, v10, v11", "v_and_b32 v11, 0xffff0000, v10", "v_lshlrev_b32 v10, 16, v10")
            if sel:
                e(f"v_fmac_f32 v10, v14, v{96+8*pr+2*c}", f"v_fmac_f32 v11, v14, v{97+8*pr+2*c}", "v_cvt_pk_bf16_f32 v10, v10, v11",
                  "v_and_b32 v11, 0xffff0000, v10", "v_lshlrev_b32 v10, 16, v10")
            e("v_pk_add_f32 v[8:9], v[8:9], v[10:11]", f"v_cvt_pk_bf16_f32 v{at}, v8, v9")
        e(f"buffer_store_dwordx4 v[{48+4*pr}:{51+4*pr}], v246, s[40:43], 0 offen offset:{64*pr}")
    stamp("fin")
    if STAMP: e("s_branch L_stamp")
    else: e("s_endpgm")
final(False)
a.lab("L_sel")
final(True)
if STAMP:
    a.lab("L_stamp")
    e("s_waitcnt vmcnt(0)", "s_memtime s[50:51]" if P("CYC", 0) else "s_memrealtime s[50:51]", f"s_cmp_lg_u32 s25, {STAMP-1}", "s_cbranch_scc1 L_end", "s_waitcnt lgkmcnt(0)",
      "s_mul_i32 s30, s2, 80", "s_add_u32 s30, s30, 0x0F000000")
    for q in range(16): e(f"v_mov_b32 v{4+q}, s{86+q}")
    e("v_mov_b32 v20, s50", "v_mov_b32 v21, s51", "v_mov_b32 v22, s50", "v_mov_b32 v23, s51", "v_mov_b32 v1, 0", "s_mov_b64 exec, 1")
    if P("DBGT", 0):
        e("s_load_dwordx2 s[44:45], s[0:1], 72", "s_waitcnt lgkmcnt(0)", "s_and_b32 s45, s45, 0xffff", "s_mov_b32 s46, 256", "s_mov_b32 s47, 0x20000",
          "v_not_b32 v5, v4", "buffer_atomic_umax v5, v1, s[44:47], 0 offen sc1")
        for q in range(9): e(f"buffer_atomic_umax v{4+2*q}, v1, s[44:47], 0 offen offset:{4+4*q} sc1")
    else:
        for q in range(5): e(f"buffer_store_dwordx4 v[{4+4*q}:{7+4*q}], v1, s[16:19], s30 offen offset:{16*q}")
a.lab("L_end"); e("s_endpgm")
a.raw('.section .rodata,"a"\n.p2align 6'); a.raw(kd(K, 256, 102))
sys.stdout.write(a.text())
```

```python
import sys, os
from lib import *
def P(n, d): return int(os.environ.get(n, d))
STAMP = P("STAMP", 0)
SE = P("SE", 6)
HOT = P("HOT", 0)
WNT = os.environ.get("WNT", "nt")
OST = os.environ.get("OST", "")
SPIN = 1 << 17
QSW = P("QSW", 1)
WS_OF, WS_KVP, WS_ZP, WS_ST, WS_CSP = 0x0, 0x400000, 0x500000, 0x510000, 0x520000
WS_GU, WS_YP = 0x560000, 0x580000
WS_E1T, WS_EP, WS_CN = 0x5A0000, 0x5A8000, 0x5B0000
C_K, C_O, C_G, C_Y = WS_CN, WS_CN + 32*128, WS_CN + 96*128, WS_CN + 160*128
WS_SIZE = 0x10000000
LOG2E, EPS6, EPS5 = 0x3FB8AA3B, 0x358637BD, 0x3727C5AC
BIG = 0x7ff00000
AB = 20480; STAGE = AB + 24576
S = 131072; T = 3*STAGE
L_INV, L_NB, L_CS, L_KEY, L_MISC, L_FLG, L_ST2 = T, T+640, T+1280, T+2048, T+2080, T+2112, T+2176
L_HS = T+3200
L_EXA, L_EXB, L_EX2, L_CST, L_XS = S, T+4096, S+16384, S+16384, T+4096
SH = "op_sel_hi:[1,0]"
a = Asm(); e = a.e
K = NAME + "_kernel"
a.raw("; @launch grid=(256,1,1) block=(512,1,1) lds=163840")
a.raw('.amdgcn_target "amdgcn-amd-amdhsa--gfx950"\n.text')
a.kernel_begin(K)
STK = os.environ.get("STK", "b0,g1end,kvpub,kvpoll,opub,y1,g2end").split(",")
def stamp(n):
    if not STAMP: return
    ins = "s_memtime" if P("CYC", 0) else "s_memrealtime"
    if n == 0: e(f"{ins} s[86:87]")
    elif n in STK:
        k = STK.index(n) + 1
        e(f"{ins} s[{86+2*k}:{87+2*k}]")
def bf16r(v): e(f"v_cvt_pk_bf16_f32 v{v}, v{v}, v{v}", f"v_and_b32 v{v}, 0xffff0000, v{v}")
def sigmoid(v): e(f"v_mul_f32 v{v}, {hex(LOG2E ^ 0x80000000)}, v{v}", f"v_exp_f32 v{v}, v{v}", "s_nop 0", f"v_add_f32 v{v}, 1.0, v{v}", f"v_rcp_f32 v{v}, v{v}", "s_nop 0")
def poll(vdst, voff, soff, mask, want, sleep=1):
    lp, ld = a.newlab("LP"), a.newlab("LD")
    e(f"s_mov_b64 exec, {mask}", f"s_mov_b32 s39, {SPIN}")
    a.lab(lp)
    e(f"v_mov_b32 v{vdst}, 0", f"buffer_atomic_add v{vdst}, v{voff}, s[16:19], s{soff} offen sc0 sc1", "s_waitcnt vmcnt(0)",
      f"v_cmp_ne_u32 vcc, {want}, v{vdst}", f"s_cbranch_vccz {ld}", f"s_sleep {sleep}", "s_sub_u32 s39, s39, 1", f"s_cbranch_scc0 {lp}")
    a.lab(ld)
    e("s_mov_b64 exec, -1")
def lds_wait(vt, vaddr, off, sleep=0):
    lp, ld = a.newlab("LW"), a.newlab("LE")
    e(f"s_mov_b32 s39, {SPIN*8}")
    a.lab(lp)
    e(f"ds_read_b32 v{vt}, v{vaddr} offset:{off}", "s_waitcnt lgkmcnt(0)", f"v_cmp_eq_u32 vcc, 0, v{vt}", f"s_cbranch_vccz {ld}")
    if sleep: e(f"s_sleep {sleep}")
    e("s_sub_u32 s39, s39, 1", f"s_cbranch_scc0 {lp}")
    a.lab(ld)
def onehot(dst, t0, t1):
    e(f"v_and_b32 v{t0}, 1, v0", f"v_lshlrev_b32 v{t0}, 4, v{t0}", f"v_lshlrev_b32 v{t0}, v{t0}, v{t1}", f"v_bfe_u32 v{t1}, v0, 1, 2")
    for q in range(4): e(f"v_cmp_eq_u32 vcc, {q}, v{t1}", "s_nop 1", f"v_cndmask_b32 v{dst+q}, 0, v{t0}, vcc")
def arrive(soff, voff=2, mask="1"):
    e("v_mov_b32 v5, 1", f"s_mov_b64 exec, {mask}", "s_waitcnt vmcnt(0)", f"buffer_atomic_add v5, v{voff}, s[16:19], s{soff} offen sc1", "s_mov_b64 exec, -1")

stamp(0)
e("s_cmp_ge_u32 s2, 256", "s_cbranch_scc1 L_end")
e("s_load_dwordx4 s[4:7], s[0:1], 0", "s_load_dwordx8 s[72:79], s[0:1], 32", "s_load_dwordx2 s[80:81], s[0:1], 64",
  "s_load_dwordx2 s[82:83], s[0:1], 80", "s_load_dwordx2 s[84:85], s[0:1], 16")
e("s_and_b32 s20, s2, 7", "s_lshr_b32 s21, s2, 3", "s_and_b32 s24, s20, 1",
  "s_mul_i32 s23, s21, 43", "s_lshr_b32 s23, s23, 8", "s_mul_i32 s30, s23, 6", "s_sub_u32 s22, s21, s30",
  "s_lshl_b32 s30, s24, 1", "s_add_u32 s30, s30, s22", "s_mul_i32 s31, s24, 7", "s_add_u32 s22, s22, s31",
  "s_cmp_ge_u32 s21, 24", "s_cselect_b32 s22, 6, s22", "s_cselect_b32 s23, s30, s23",
  "s_cmp_ge_u32 s21, 26", "s_cselect_b32 s57, 1, 0",
  "s_lshr_b32 s31, s20, 1", "s_lshl_b32 s30, s31, 2", "s_add_u32 s23, s23, s30",
  "s_mul_i32 s58, s20, 6", "s_add_u32 s58, s58, s21", "s_sub_u32 s58, s58, 26",
  "s_and_b32 s28, s21, 3", "s_add_u32 s28, s28, s30",
  "s_lshl_b32 s29, s24, 3", "s_lshr_b32 s30, s21, 2", "s_add_u32 s29, s29, s30")
e("v_lshrrev_b32 v1, 6, v0", "v_and_b32 v0, 63, v0", "v_lshlrev_b32 v2, 4, v0", "v_readfirstlane_b32 s25, v1")
e("s_waitcnt lgkmcnt(0)")
e(f"s_mov_b32 s30, {hex(WS_EP)}", "s_load_dword s52, s[82:83], s30")
a.srd(8, 4, 0x400000); a.srd(12, 6, 0x600000); a.srd(16, 82, WS_SIZE)
e("s_cmp_ge_u32 s25, 6", "s_cbranch_scc1 L_service", "s_cmp_ge_u32 s25, 4", "s_cbranch_scc1 L_loader")

e("s_setprio 2")
a.srd(40, 72, 2048)
e("s_lshr_b32 s26, s25, 1", "s_and_b32 s27, s25, 1")
e("s_lshl_b32 s33, s2, 3", "s_lshl_b32 s31, s25, 1", "s_add_u32 s33, s33, s31", "s_lshl_b32 s30, s33, 11")
for q in range(4): e(f"buffer_load_dwordx4 v[{64+4*q}:{67+4*q}], v2, s[8:11], s30 offen offset:{q*1024}")
e("buffer_load_dwordx4 v[112:115], v2, s[40:43], 0 offen", "buffer_load_dwordx4 v[116:119], v2, s[40:43], 0 offen offset:1024")
e("v_lshrrev_b32 v1, 3, v0", "v_mul_u32_u24 v3, 6144, v1", "v_and_b32 v4, 7, v0", "v_lshlrev_b32 v4, 4, v4", "v_add_u32 v3, v3, v4",
  "s_lshr_b32 s30, s2, 4", "s_lshl_b32 s30, s30, 6", "s_lshl_b32 s31, s25, 4", "s_add_u32 s30, s30, s31", "s_mul_i32 s30, s30, 6144",
  "s_and_b32 s31, s2, 15", "s_mul_i32 s31, s31, 384", "s_add_u32 s30, s30, s31")
for n in range(2):
    for ln in range(3): e(f"buffer_load_dwordx4 v[{80+12*n+4*ln}:{83+12*n+4*ln}], v3, s[12:15], s30 offen offset:{128*ln}")
    if n == 0: e("s_add_u32 s30, s30, 49152")
NHOT = 0
if HOT:
    NHOT = 1
    e("s_mul_i32 s30, s21, 96", "s_mul_i32 s31, s25, 24", "s_add_u32 s30, s30, s31", "v_add_u32 v1, s30, v0", "v_lshlrev_b32 v1, 11, v1",
      "v_cmp_gt_u32 vcc, 24, v0", f"v_mov_b32 v4, {hex(BIG)}", "s_lshr_b32 s31, s20, 1", "s_lshl_b32 s31, s31, 9", "s_add_u32 s31, s31, 384", "v_cndmask_b32 v1, v4, v1, vcc",
      "s_bitcmp1_b32 s20, 1", "s_cselect_b32 s31, 0x600000, s31",
      "buffer_load_dword v63, v1, s[12:15], s31 offen")
e("v_mov_b32 v121, 0x3f80"); onehot(124, 120, 121)
e("s_mul_i32 s30, s26, 10240",
  "v_and_b32 v1, 15, v0", "v_lshrrev_b32 v5, 4, v0", "v_lshrrev_b32 v3, 1, v1", "v_xor_b32 v3, v3, v5",
  "v_lshlrev_b32 v3, 4, v3", "v_lshlrev_b32 v1, 7, v1", "v_add_u32 v1, v1, v3", "v_add_u32 v4, s30, v1",
  "v_xor_b32 v5, 64, v4", f"v_add_u32 v8, {2*STAGE}, v4", f"v_add_u32 v9, {2*STAGE}, v5")
e("v_lshrrev_b32 v1, 4, v0", "v_lshlrev_b32 v1, 10, v1", "v_bfe_u32 v6, v0, 2, 2", "v_lshlrev_b32 v3, 7, v6", "v_add_u32 v1, v1, v3",
  "v_lshrrev_b32 v6, 1, v6", "v_xor_b32 v6, s27, v6", "v_lshlrev_b32 v6, 1, v6", "v_bfe_u32 v3, v0, 4, 1", "v_or_b32 v6, v6, v3",
  "v_lshlrev_b32 v6, 5, v6", "v_add_u32 v1, v1, v6", "v_and_b32 v6, 3, v0", "v_lshlrev_b32 v6, 3, v6", "v_add_u32 v10, v1, v6")
for s in (2, 1, 0): e(f"v_add_u32 v{10+s}, {s*STAGE+AB}, v10")
for s in (2, 1, 0): e(f"v_xor_b32 v{13+s}, 32, v{10+s}")
e(f"s_waitcnt vmcnt({8+NHOT})")
for rw in range(2):
    for i in range(8): e(f"v_lshlrev_b32 v{16+16*rw+2*i}, 16, v{64+8*rw+i}", f"v_and_b32 v{17+16*rw+2*i}, 0xffff0000, v{64+8*rw+i}")
e("v_pk_add_f32 v[48:49], v[16:17], v[18:19]", "v_pk_add_f32 v[50:51], v[32:33], v[34:35]")
for i in range(2, 8): e(f"v_pk_add_f32 v[48:49], v[48:49], v[{16+2*i}:{17+2*i}]", f"v_pk_add_f32 v[50:51], v[50:51], v[{32+2*i}:{33+2*i}]")
e("v_add_f32 v48, v48, v49", "v_add_f32 v50, v50, v51")
a.wave_allreduce([48, 50], [49, 51])
e("v_mul_f32 v48, 0xba800000, v48", "v_mul_f32 v50, 0xba800000, v50")
e("v_mov_b32 v52, 0", "v_mov_b32 v53, 0", "v_mov_b32 v54, 0", "v_mov_b32 v55, 0")
for i in range(8):
    e(f"v_pk_add_f32 v[56:57], v[{16+2*i}:{17+2*i}], v[48:49] {SH}", f"v_pk_add_f32 v[58:59], v[{32+2*i}:{33+2*i}], v[50:51] {SH}",
      "v_pk_fma_f32 v[52:53], v[56:57], v[56:57], v[52:53]", "v_pk_fma_f32 v[54:55], v[58:59], v[58:59], v[54:55]")
e("v_add_f32 v52, v52, v53", "v_add_f32 v54, v54, v55")
a.wave_allreduce([52, 54], [53, 55])
e("v_mul_f32 v52, 0x3a800000, v52", "v_mul_f32 v54, 0x3a800000, v54")
for v in (48, 50, 52, 54): bf16r(v)
e(f"v_add_f32 v52, {hex(EPS5)}, v52", f"v_add_f32 v54, {hex(EPS5)}, v54"); bf16r(52); bf16r(54)
e("v_sqrt_f32 v52, v52", "v_sqrt_f32 v54, v54", "s_nop 0"); bf16r(52); bf16r(54)
e("v_rcp_f32 v52, v52", "v_rcp_f32 v54, v54")
for rw in range(2):
    b = 16 + 16*rw
    for i in range(8): e(f"v_pk_add_f32 v[{b+2*i}:{b+2*i+1}], v[{b+2*i}:{b+2*i+1}], v[{48+2*rw}:{49+2*rw}] {SH}")
    for i in range(8): e(f"v_cvt_pk_bf16_f32 v{64+8*rw+i}, v{b+2*i}, v{b+2*i+1}")
    for i in range(8): e(f"v_lshlrev_b32 v{b+2*i}, 16, v{64+8*rw+i}", f"v_and_b32 v{b+2*i+1}, 0xffff0000, v{64+8*rw+i}")
    for i in range(8): e(f"v_pk_mul_f32 v[{b+2*i}:{b+2*i+1}], v[{b+2*i}:{b+2*i+1}], v[{52+2*rw}:{53+2*rw}] {SH}")
    for i in range(8): e(f"v_cvt_pk_bf16_f32 v{64+8*rw+i}, v{b+2*i}, v{b+2*i+1}")
e("v_mov_b32 v49, 0", "v_mov_b32 v51, 0", f"s_waitcnt vmcnt({NHOT})")
for n in range(2):
    for ln in range(3): e(f"v_mfma_f32_16x16x32_bf16 v[{104+4*ln if ln < 2 else 128}:{107+4*ln if ln < 2 else 131}], v[{80+12*n+4*ln}:{83+12*n+4*ln}], v[124:127], " + ("0" if n == 0 else f"v[{104+4*ln if ln < 2 else 128}:{107+4*ln if ln < 2 else 131}]"))
for i in range(8): e(f"v_dot2_f32_bf16 v49, v{64+i}, v{112+i}, v49", f"v_dot2_f32_bf16 v51, v{72+i}, v{112+i}, v51")
e("s_mul_i32 s30, s25, 3072", f"s_add_u32 s30, s30, {L_CST}", "v_add_u32 v1, s30, v2",
  "ds_write_b128 v1, v[104:107]", "ds_write_b128 v1, v[108:111] offset:1024", "ds_write_b128 v1, v[128:131] offset:2048")
a.wave_allreduce([49, 51], [53, 55])
e("v_cmp_eq_u32 vcc, 1, v0", "v_mov_b32 v59, 0", "s_lshl_b32 s30, s33, 4", f"s_add_u32 s30, s30, {hex(WS_ST)}",
  "v_cndmask_b32 v56, v48, v50, vcc", "v_cndmask_b32 v57, v52, v54, vcc", "v_cndmask_b32 v58, v49, v51, vcc",
  "v_ashrrev_i32 v60, 31, v58", "v_or_b32 v60, 0x80000000, v60", "v_xor_b32 v60, v60, v58", "v_and_b32 v60, 0xfffff800, v60",
  "s_sub_u32 s31, 2047, s33", "v_sub_u32 v61, s31, v0", "v_or_b32 v60, v60, v61",
  "s_lshl_b32 s31, s25, 3", f"s_add_u32 s31, s31, {L_KEY}", "v_lshlrev_b32 v61, 2, v0", "v_add_u32 v61, s31, v61",
  "s_mov_b64 exec, 3",
  "buffer_store_dwordx4 v[56:59], v2, s[16:19], s30 offen sc1", "ds_write_b32 v61, v60",
  "s_mov_b64 exec, -1", "s_cmp_eq_u32 s57, 1", "s_cbranch_scc1 L_moe_a")

ACC = 16
FR = [136, 180]
def reads(s, k2, st):
    f = FR[st]; ab = 4 + k2 if s < 2 else 8 + k2; ao = (s & 1) * STAGE
    def rb(i): return [f"ds_read_b128 v[{f+4*i}:{f+4*i+3}], v{ab} offset:{ao + i*2048}"]
    def rt(c):
        base = 10 + s if (c & 1) == 0 else 13 + s
        o = (c >> 1) * 8192 + k2 * 4096
        return [f"ds_read_b64_tr_b16 v[{f+20+4*c}:{f+21+4*c}], v{base} offset:{o}", f"ds_read_b64_tr_b16 v[{f+22+4*c}:{f+23+4*c}], v{base} offset:{o+512}"]
    return rb(0) + rt(0) + rb(1) + rb(2) + rt(1) + rb(3) + rb(4) + rt(2) + rt(3) + rt(4) + rt(5)
def mfmas(st, zero=False):
    f = FR[st]; L = []
    for c in range(6):
        for r in range(5):
            d = ACC + (c*5 + r)*4
            A = f"v[{f+4*r}:{f+4*r+3}]"; B = f"v[{f+20+4*c}:{f+23+4*c}]"
            if c < 2: A, B = B, A
            L.append(f"v_mfma_f32_16x16x32_bf16 v[{d}:{d+3}], {A}, {B}, " + ("0" if zero else f"v[{d}:{d+3}]"))
    return L
st = 0
def step(s, snext, first=False):
    global st
    for k2 in range(2):
        e("s_waitcnt vmcnt(0) lgkmcnt(0)" if (first and k2 == 1) else "s_waitcnt lgkmcnt(0)")
        if k2 == 1:
            e("s_barrier"); R = reads(snext, 0, st ^ 1)
        else: R = reads(s, 1, st ^ 1)
        M = mfmas(st, first and k2 == 0)
        for q in range(30):
            e(M[q])
            if q < 17: e(R[q])
        st ^= 1
e("s_waitcnt lgkmcnt(0)", "s_barrier")
stamp("b0")
e(*reads(0, 0, 0))
step(0, 1, True)
e("s_mov_b32 s31, 0")
a.lab("L_cloop")
step(1, 2); step(2, 0); step(0, 1)
e("s_add_u32 s31, s31, 1", "s_cmp_lt_u32 s31, 5", "s_cbranch_scc1 L_cloop")
stamp("g1end")
TI, TN = 136, 156
EV = [176, 178, 12, 14]
PK, VB, KV, Z, ON = 180, 204, 228, 244, 252
e("s_waitcnt lgkmcnt(0)",
  "v_lshrrev_b32 v1, 4, v0", "v_lshlrev_b32 v1, 4, v1", "s_mul_i32 s30, s26, 320", f"s_add_u32 s30, s30, {L_INV}", "v_add_u32 v3, s30, v1",
  "v_and_b32 v4, 15, v0", "v_lshlrev_b32 v4, 2, v4", "s_lshl_b32 s31, s27, 7", f"s_add_u32 s31, s31, {L_CS}", "v_add_u32 v5, s31, v4",
  "v_add_u32 v6, s30, v4", "v_add_u32 v7, s31, v1")
for q in range(4): e(f"ds_read_b32 v{EV[q]}, v5 offset:{256*(1+(q>>1)) + 64*(q&1)}")
for r in range(5): e(f"ds_read_b128 v[{TI+4*r}:{TI+4*r+3}], v3 offset:{64*r}", f"ds_read_b128 v[{TN+4*r}:{TN+4*r+3}], v3 offset:{640+64*r}")
e(f"s_mov_b32 s34, {hex(LOG2E)}", f"s_mov_b32 s35, {hex(LOG2E)}", f"s_mov_b32 s36, {hex(EPS6)}",
  "s_lshl_b32 s37, s22, 1", "s_add_u32 s37, s37, s26", "s_cmp_eq_u32 s37, 25", "s_cselect_b32 s59, 0, -1")
for q in range(4): e(f"v_mov_b32 v{ON+q}, 0x3f803f80")
for b in (PK, PK+12, VB, VB+12): e(f"v_mov_b32 v{b+10}, 0", f"v_mov_b32 v{b+11}, 0")
e("s_add_u32 s52, s52, 1")
def phi2(r, dst, t):
    e(f"v_pk_mul_f32 v[{t}:{t+1}], v[{r}:{r+1}], s[34:35]",
      f"v_exp_f32_e64 v{t}, v{t} clamp", f"v_exp_f32_e64 v{t+1}, v{t+1} clamp",
      f"v_max_f32 v{r}, s36, v{r}", f"v_max_f32 v{r+1}, s36, v{r+1}",
      f"v_pk_add_f32 v[{t}:{t+1}], v[{t}:{t+1}], v[{r}:{r+1}]",
      f"v_cvt_pk_bf16_f32 v{dst}, v{t}, v{t+1}")
for rp in range(3):
    rows = (2*rp, 2*rp+1) if rp < 2 else (4,)
    for r in rows:
        e(f"s_waitcnt lgkmcnt({8-2*r})")
        for c in range(2, 6):
            d = ACC + (c*5+r)*4; cs = f"v[{EV[c-2]}:{EV[c-2]+1}]"
            e(f"v_pk_mul_f32 v[8:9], v[{TN+4*r}:{TN+4*r+1}], {cs} {SH}", f"v_pk_mul_f32 v[10:11], v[{TN+4*r+2}:{TN+4*r+3}], {cs} {SH}",
              f"v_pk_fma_f32 v[{d}:{d+1}], v[{d}:{d+1}], v[{TI+4*r}:{TI+4*r+1}], v[8:9]", f"v_pk_fma_f32 v[{d+2}:{d+3}], v[{d+2}:{d+3}], v[{TI+4*r+2}:{TI+4*r+3}], v[10:11]")
            if c < 4:
                o = PK + (c-2)*12 + rp*4 + (r & 1)*2
                phi2(d, o, 8); phi2(d+2, o+1, 10)
            else:
                o = VB + (c-4)*12 + rp*4 + (r & 1)*2
                e(f"v_cvt_pk_bf16_f32 v{o}, v{d}, v{d+1}", f"v_cvt_pk_bf16_f32 v{o+1}, v{d+2}, v{d+3}")
            if r >= 3: e(f"v_and_b32 v{o}, s59, v{o}", f"v_and_b32 v{o+1}, s59, v{o+1}")
    e("s_nop 1")
    for db in range(2):
        A = f"v[{PK+12*db+4*rp}:{PK+12*db+4*rp+3}]"
        for eb in range(2):
            d = KV + 8*eb + 4*db
            e(f"v_mfma_f32_16x16x32_bf16 v[{d}:{d+3}], {A}, v[{VB+12*eb+4*rp}:{VB+12*eb+4*rp+3}], " + ("0" if rp == 0 else f"v[{d}:{d+3}]"))
        d = Z + 4*db
        e(f"v_mfma_f32_16x16x32_bf16 v[{d}:{d+3}], {A}, v[{ON}:{ON+3}], " + ("0" if rp == 0 else f"v[{d}:{d+3}]"))
stamp("kvmfma")
e("s_lshl_b32 s38, s23, 1", "s_add_u32 s38, s38, s27",
  f"v_mov_b32 v4, {L_FLG}", "v_mov_b32 v10, 1", "s_lshl_b32 s31, s25, 2", "v_add_u32 v9, s31, v4", "v_xor_b32 v8, 8, v9",
  "s_lshl_b32 s33, s27, 11", f"s_add_u32 s33, s33, {L_EXA}", "v_add_u32 v1, s33, v2", "s_lshl_b32 s33, s27, 12", f"s_add_u32 s33, s33, {L_EXB}", "v_add_u32 v3, s33, v2",
  "s_lshl_b32 s30, s38, 4", "s_add_u32 s30, s30, s22", "s_lshl_b32 s31, s30, 11", "s_lshl_b32 s32, s26, 10", "s_add_u32 s31, s31, s32", f"s_add_u32 s31, s31, {hex(WS_KVP)}",
  "s_lshl_b32 s30, s30, 7", f"s_add_u32 s30, s30, {hex(WS_ZP)}",
  "s_lshl_b32 s32, s38, 7", f"s_add_u32 s32, s32, {hex(C_K)}",
  "s_cmp_eq_u32 s26, 0", "s_cbranch_scc1 L_wr0")
X = 136
e(f"ds_write_b128 v3, v[{KV}:{KV+3}]", f"ds_write_b128 v3, v[{KV+4}:{KV+7}] offset:1024", f"ds_write_b128 v3, v[{Z}:{Z+3}] offset:2048", f"ds_write_b128 v3, v[{Z+4}:{Z+7}] offset:3072",
  "ds_write_b32 v9, v10")
lds_wait(5, 8, 0)
e(f"ds_read_b128 v[{X}:{X+3}], v1", f"ds_read_b128 v[{X+4}:{X+7}], v1 offset:1024", "s_waitcnt lgkmcnt(0)")
for q in range(4): e(f"v_pk_add_f32 v[{KV+8+2*q}:{KV+9+2*q}], v[{KV+8+2*q}:{KV+9+2*q}], v[{X+2*q}:{X+1+2*q}]")
for p in range(4): e(f"v_cvt_pk_bf16_f32 v{PK+p}, v{KV+8+2*p}, v{KV+9+2*p}")
e(f"buffer_store_dwordx4 v[{PK}:{PK+3}], v2, s[16:19], s31 offen sc1", "s_branch L_kvflag")
a.lab("L_wr0")
e(f"ds_write_b128 v1, v[{KV+8}:{KV+11}]", f"ds_write_b128 v1, v[{KV+12}:{KV+15}] offset:1024", "ds_write_b32 v9, v10")
lds_wait(5, 8, 0)
for q in range(4): e(f"ds_read_b128 v[{X+4*q}:{X+3+4*q}], v3 offset:{q*1024}")
e("v_lshlrev_b32 v5, 1, v0", "s_waitcnt lgkmcnt(2)")
for q in range(4): e(f"v_pk_add_f32 v[{KV+2*q}:{KV+1+2*q}], v[{KV+2*q}:{KV+1+2*q}], v[{X+2*q}:{X+1+2*q}]")
for p in range(4): e(f"v_cvt_pk_bf16_f32 v{PK+p}, v{KV+2*p}, v{KV+1+2*p}")
e(f"buffer_store_dwordx4 v[{PK}:{PK+3}], v2, s[16:19], s31 offen sc1", "s_waitcnt lgkmcnt(0)")
for q in range(4): e(f"v_pk_add_f32 v[{Z+2*q}:{Z+1+2*q}], v[{Z+2*q}:{Z+1+2*q}], v[{X+8+2*q}:{X+9+2*q}]")
e("s_mov_b32 exec_lo, 0x00010001", "s_mov_b32 exec_hi, 0x00010001",
  f"buffer_store_dwordx4 v[{Z}:{Z+3}], v5, s[16:19], s30 offen sc1", f"buffer_store_dwordx4 v[{Z+4}:{Z+7}], v5, s[16:19], s30 offen offset:16 sc1", "s_mov_b64 exec, -1")
a.lab("L_kvflag")
stamp("kvex")
QI, QN, CQ, PQ = 156, 166, 148, 204
for r in range(5): e(f"ds_read_b32 v{QI+2*r}, v6 offset:{64*r}", f"ds_read_b32 v{QN+2*r}, v6 offset:{640+64*r}")
for c in range(2): e(f"ds_read_b128 v[{CQ+4*c}:{CQ+3+4*c}], v7 offset:{64*c}")
def qblock(r):
    inv = f"v[{QI+2*r}:{QI+1+2*r}]"; nb = f"v[{QN+2*r}:{QN+1+2*r}]"
    for c in range(2):
        d = ACC + (c*5+r)*4
        e(f"v_pk_mul_f32 v[12:13], v[{CQ+4*c}:{CQ+1+4*c}], {nb} {SH}", f"v_pk_mul_f32 v[14:15], v[{CQ+2+4*c}:{CQ+3+4*c}], {nb} {SH}",
          f"v_pk_fma_f32 v[{d}:{d+1}], v[{d}:{d+1}], {inv}, v[12:13] op_sel_hi:[1,0,1]", f"v_pk_fma_f32 v[{d+2}:{d+3}], v[{d+2}:{d+3}], {inv}, v[14:15] op_sel_hi:[1,0,1]")
        phi2(d, PQ+4*r+2*c, 12); phi2(d+2, PQ+4*r+2*c+1, 14)
QF = P("QF", 2)
e("s_waitcnt lgkmcnt(0)")
for r in range(QF): qblock(r)
arrive(32)
if QSW: e("s_xor_b32 s38, s38, 2", "s_xor_b32 s23, s23, 1")
stamp("kvpub")
for r in range(QF, 5): qblock(r)
e("v_mov_b32 v60, 0", "v_mov_b32 v61, 0", "v_mov_b32 v64, 0", "v_mov_b32 v65, 0", "v_mov_b32 v57, 0x3f80",
  "v_and_b32 v56, 1, v0", "v_lshlrev_b32 v56, 4, v56", "v_lshlrev_b32 v56, v56, v57",
  "v_bfe_u32 v57, v0, 2, 2", "v_lshrrev_b32 v58, 4, v0", "v_cmp_eq_u32 vcc, v57, v58", "v_bfe_u32 v57, v0, 1, 1", "s_nop 0", "v_cndmask_b32 v56, 0, v56, vcc",
  "v_cmp_eq_u32 vcc, 0, v57", "s_nop 1", "v_cndmask_b32 v62, 0, v56, vcc", "v_cndmask_b32 v63, v56, 0, vcc",
  "v_lshlrev_b32 v11, 5, v0", "v_cmp_gt_u32 vcc, 52, v0", f"v_mov_b32 v7, {hex(BIG)}", "v_lshrrev_b32 v6, 4, v0", "v_cndmask_b32 v11, v7, v11, vcc", "v_lshlrev_b32 v6, 2, v6",
  "s_lshl_b32 s30, s38, 15", "s_mul_i32 s31, s26, 14336", "s_add_u32 s30, s30, s31", f"s_add_u32 s30, s30, {hex(WS_KVP)}")
e("s_mul_i32 s31, s22, 37", "s_lshr_b32 s31, s31, 8", "s_mul_i32 s31, s31, 7", "s_sub_u32 s31, s22, s31")
for p in range(7):
    e(f"s_lshl_b32 s{60+p}, s31, 11", f"s_add_u32 s{60+p}, s{60+p}, s30", "s_mul_i32 s33, s26, 7", "s_add_u32 s33, s33, s31", "s_cmp_eq_u32 s33, 13",
      f"s_cselect_b32 s{60+p}, {hex(BIG)}, s{60+p}", "s_add_u32 s31, s31, 1", "s_cmp_eq_u32 s31, 7", "s_cselect_b32 s31, 0, s31")
e("s_lshl_b32 s33, s38, 11", f"s_add_u32 s33, s33, {hex(WS_ZP)}")
stamp("qdone")
e("s_cmp_lg_u32 s25, 0", "s_cbranch_scc1 L_kvw", "v_lshlrev_b32 v5, 7, v0", "s_lshl_b32 s30, s23, 8", f"s_add_u32 s30, s30, {hex(C_K)}")
if P("DLK", 4): e(f"s_sleep {P('DLK', 4)}")
poll(7, 5, 30, "3", 26, sleep=P("SLK", 2))
e("ds_write_b32 v4, v10 offset:32", "s_branch L_kvgo")
a.lab("L_kvw")
lds_wait(5, 4, 32, 1)
a.lab("L_kvgo")
stamp("kvpoll")
ZR, PL, SU = 16, 72, 40
e(f"buffer_load_dwordx4 v[{ZR}:{ZR+3}], v11, s[16:19], s33 offen sc1", f"buffer_load_dwordx4 v[{ZR+4}:{ZR+7}], v11, s[16:19], s33 offen offset:16 sc1")
for p in range(7):
    e(f"buffer_load_dwordx4 v[{PL+8*p}:{PL+3+8*p}], v2, s[16:19], s{60+p} offen sc1", f"buffer_load_dwordx4 v[{PL+4+8*p}:{PL+7+8*p}], v2, s[16:19], s{60+p} offen offset:1024 sc1")
e("s_lshl_b32 s30, s25, 12", f"s_add_u32 s30, s30, {L_EX2}", "v_add_u32 v3, s30, v2", "v_xor_b32 v7, 8192, v3",
  "s_mul_i32 s30, s37, 5", "s_lshl_b32 s30, s30, 5", "s_add_u32 s30, s30, s38", "s_lshl_b32 s30, s30, 10",
  "s_mov_b32 s44, s16", "s_mov_b32 s45, s17", "s_mov_b32 s46, 0x400000", "s_mov_b32 s47, 0x20000",
  "s_waitcnt vmcnt(14)")
for ctrl in ("row_ror:4", "row_ror:8"):
    for c in range(8): e(f"v_add_f32_dpp v{ZR+c}, v{ZR+c}, v{ZR+c} {ctrl} row_mask:0xf bank_mask:0xf")
for sw in ("v_permlane16_swap_b32", "v_permlane32_swap_b32"):
    for c in range(8): e(f"v_mov_b32 v{ZR+8+c}, v{ZR+c}")
    for c in range(8): e(f"{sw} v{ZR+c}, v{ZR+8+c}")
    for c in range(8): e(f"v_add_f32 v{ZR+c}, v{ZR+c}, v{ZR+8+c}")
for p in range(4): e(f"v_cvt_pk_bf16_f32 v{ZR+p}, v{ZR+2*p}, v{ZR+1+2*p}")
for p in range(4): e(f"ds_bpermute_b32 v{ZR+8+p}, v6, v{ZR+p}")
for p in range(7):
    e(f"s_waitcnt vmcnt({2*(6-p)})")
    for eb in range(2):
        for hf in range(2):
            d = SU + 8*eb + 4*hf
            e(f"v_mfma_f32_16x16x32_bf16 v[{d}:{d+3}], v[{62-2*hf}:{65-2*hf}], v[{PL+8*p+4*eb}:{PL+3+8*p+4*eb}], " + ("0" if p == 0 else f"v[{d}:{d+3}]"))
stamp("paysum")
e("s_waitcnt lgkmcnt(0)")
NU = 136
for r in range(5): e(f"v_mfma_f32_16x16x32_bf16 v[{NU+12*r+8}:{NU+12*r+11}], v[24:27], v[{PQ+4*r}:{PQ+4*r+3}], 0")
e("s_nop 2")
for q in range(4): e(f"ds_write_b128 v3, v[{SU+4*q}:{SU+3+4*q}] offset:{q*1024}")
e("ds_write_b32 v9, v10 offset:16")
for r in range(5): e(f"v_add_f32 v{NU+12*r+8}, s36, v{NU+12*r+8}")
for r in range(5): e(f"v_rcp_f32 v{NU+12*r+8}, v{NU+12*r+8}")
lds_wait(5, 8, 16)
for q in range(4): e(f"ds_read_b128 v[{PL+4*q}:{PL+3+4*q}], v7 offset:{q*1024}")
for q in range(8):
    if q % 2 == 0: e(f"s_waitcnt lgkmcnt({3 - q//2})")
    e(f"v_pk_add_f32 v[{SU+2*q}:{SU+1+2*q}], v[{SU+2*q}:{SU+1+2*q}], v[{PL+2*q}:{PL+1+2*q}]", f"v_cvt_pk_bf16_f32 v{16+q}, v{SU+2*q}, v{SU+1+2*q}")
e("s_nop 1")
for r in range(5):
    n = NU + 12*r
    e(f"v_mfma_f32_16x16x32_bf16 v[{n}:{n+3}], v[16:19], v[{PQ+4*r}:{PQ+4*r+3}], 0",
      f"v_mfma_f32_16x16x32_bf16 v[{n+4}:{n+7}], v[20:23], v[{PQ+4*r}:{PQ+4*r+3}], 0")
for r in range(5):
    n = NU + 12*r
    for q in range(4): e(f"v_pk_mul_f32 v[{n+2*q}:{n+2*q+1}], v[{n+2*q}:{n+2*q+1}], v[{n+8}:{n+9}] {SH}")
    for q in range(4): e(f"v_cvt_pk_bf16_f32 v{PL+4*r+q}, v{n+2*q}, v{n+2*q+1}")
    e(f"buffer_store_dwordx4 v[{PL+4*r}:{PL+3+4*r}], v2, s[44:47], s30 offen sc1", "s_add_u32 s30, s30, 32768")
stamp("ostore")
e("s_mul_i32 s30, s37, 5", "s_add_u32 s31, s30, 4", "s_min_u32 s31, s31, 127", "s_lshr_b32 s30, s30, 3", "s_lshr_b32 s31, s31, 3",
  "s_cmp_eq_u32 s30, s31", "s_cselect_b64 s[60:61], 1, 3", "s_lshl_b32 s30, s30, 9", "s_and_b32 s31, s23, 3", "s_lshl_b32 s31, s31, 7", "s_add_u32 s30, s30, s31",
  f"s_add_u32 s30, s30, {hex(C_O)}", "v_lshlrev_b32 v6, 9, v0")
arrive(30, 6, "s[60:61]")
stamp("opub")
e("s_branch L_phase2")

a.lab("L_loader")
e("s_cmp_eq_u32 s57, 1", "s_cbranch_scc1 L_moe_b")
e("s_sub_u32 s26, s25, 4")
e("s_mul_i32 s30, s22, 160", "s_mul_i32 s31, s26, 80", "s_add_u32 s30, s30, s31",
  "v_lshrrev_b32 v1, 3, v0", "v_add_u32 v3, s30, v1", "v_lshlrev_b32 v3, 11, v3",
  "v_and_b32 v4, 7, v0", "v_lshrrev_b32 v5, 4, v0", "v_xor_b32 v6, v4, v5", "v_lshlrev_b32 v6, 4, v6",
  "v_add_u32 v16, v3, v6", "v_xor_b32 v17, 64, v16", "v_add_u32 v17, 16384, v17")
for q in range(2, 10): e(f"v_add_u32 v{16+q}, {32768*(q>>1)}, v{16+(q&1)}")
e("s_lshl_b32 s30, s26, 5", "v_add_u32 v3, s30, v1", "v_mul_u32_u24 v3, 6144, v3",
  "v_and_b32 v6, 1, v5", "v_lshlrev_b32 v6, 2, v6", "v_xor_b32 v6, v4, v6", "v_lshlrev_b32 v6, 4, v6",
  "v_add_u32 v3, v3, v6", "s_lshl_b32 s30, s23, 7", "v_add_u32 v28, s30, v3", "v_xor_b32 v29, 32, v28", "v_add_u32 v29, 49152, v29")
for sec in (2, 1, 0):
    for p in (3, 2, 1, 0):
        if sec or p >= 2: e(f"v_add_u32 v{28+sec*4+p}, {sec*2048 + (p>>1)*98304}, v{28+(p&1)}")
if QSW:
    for p in range(4): e(f"v_xor_b32 v{28+p}, 128, v{28+p}")
e("s_mul_i32 s32, s26, 10240", "s_lshl_b32 s33, s26, 12", f"s_add_u32 s33, s33, {AB}", "s_mov_b32 s34, 0", "s_mov_b32 s35, 0", "s_mov_b32 s36, 0")
e("s_mov_b32 s31, 0")
a.lab("L_lloop")
e("s_cmp_lt_u32 s31, 2", "s_cbranch_scc1 L_lissue", "s_waitcnt vmcnt(22)", "s_barrier")
a.lab("L_lissue")
e("s_add_u32 s37, s36, s32", "s_add_u32 s38, s36, s33")
for q in range(10): e(f"s_add_u32 m0, s37, {q*1024}", "s_nop 0", f"buffer_load_dwordx4 v{16+q}, s[8:11], s34 offen lds")
for sec in range(3):
    for p in range(4): e(f"s_add_u32 m0, s38, {sec*8192 + p*1024}", "s_nop 0", f"buffer_load_dwordx4 v{28+sec*4+p}, s[12:15], s35 offen lds")
e("s_add_u32 s34, s34, 128", "s_add_u32 s35, s35, 393216", f"s_add_u32 s36, s36, {STAGE}", f"s_cmp_eq_u32 s36, {3*STAGE}", "s_cselect_b32 s36, 0, s36")
e("s_add_u32 s31, s31, 1", "s_cmp_lt_u32 s31, 16", "s_cbranch_scc1 L_lloop")
e("s_waitcnt vmcnt(22)", "s_barrier", "s_waitcnt vmcnt(0) lgkmcnt(0)", "s_add_u32 s52, s52, 1", "s_barrier", "s_barrier")
a.lab("L_wo")
stamp("wostart")
a.srd(40, 84, 0x200000)
e("s_sub_u32 s26, s25, 4", "v_lshrrev_b32 v1, 3, v0", "v_and_b32 v4, 7, v0", "v_lshrrev_b32 v5, 4, v0",
  "v_lshlrev_b32 v3, 11, v1", "v_lshlrev_b32 v6, 1, v5", "v_xor_b32 v6, v4, v6", "v_lshlrev_b32 v6, 4, v6", "v_add_u32 v3, v3, v6",
  "s_lshl_b32 s30, s29, 7", "v_add_u32 v40, s30, v3",
  "s_and_b32 s33, s29, 7", "s_lshl_b32 s33, s33, 1", "s_and_b32 s34, s28, 3", "s_lshl_b32 s34, s34, 2", "s_sub_u32 s34, s34, s33", "s_mov_b32 s31, 0")
a.lab("L_woloop")
e("s_and_b32 s35, s34, 15", "s_add_u32 s37, s35, s33", "s_and_b32 s37, s37, 15", "s_lshl_b32 s36, s26, 4",
  "s_add_u32 s35, s35, s36", "s_add_u32 s37, s37, s36", "s_lshl_b32 s35, s35, 12", "s_lshl_b32 s37, s37, 16")
for q in range(4): e(f"s_add_u32 m0, s35, {q*1024}", "s_nop 0", "buffer_load_dwordx4 v40, s[40:43], s37 offen lds", "s_add_u32 s37, s37, 16384")
e("s_waitcnt vmcnt(40)", "s_add_u32 s34, s34, 1", "s_add_u32 s31, s31, 1", "s_cmp_lt_u32 s31, 16", "s_cbranch_scc1 L_woloop")
e("s_waitcnt vmcnt(0)")
stamp("wodone")
e("s_branch L_phase2")

def act0():
    e("v_lshrrev_b32 v4, 4, v0", "v_lshlrev_b32 v4, 10, v4", "v_bfe_u32 v5, v0, 3, 1", "v_lshlrev_b32 v5, 8, v5", "v_add_u32 v4, v4, v5",
      "v_and_b32 v5, 7, v0", "v_lshlrev_b32 v5, 4, v5", "v_add_u32 v4, v4, v5", f"v_add_u32 v4, {L_CST}, v4", f"v_mov_b32 v6, {L_KEY}")
    for q in range(8): e(f"ds_read_b128 v[{8+4*q}:{11+4*q}], v4 offset:{(q>>1)*3072 + (q&1)*640}")
    e("ds_read_b128 v[40:43], v6", "ds_read_b128 v[44:47], v6 offset:16",
      "s_lshr_b32 s30, s2, 4", "s_mul_i32 s30, s30, 12288", "s_and_b32 s31, s2, 15", "s_mul_i32 s31, s31, 768", "s_add_u32 s30, s30, s31", f"s_add_u32 s30, s30, {hex(WS_CSP)}", "s_waitcnt lgkmcnt(0)")
    for q in range(1, 8):
        for c in range(4): e(f"v_add_f32 v{8+c}, v{8+c}, v{8+4*q+c}")
    e("v_max3_u32 v40, v40, v41, v42", "v_max3_u32 v40, v40, v43, v44", "v_max3_u32 v40, v40, v45, v46", "v_max_u32 v40, v40, v47", "v_mov_b32 v41, s52",
      "s_mov_b32 exec_hi, 0xffff", "buffer_store_dwordx4 v[8:11], v2, s[16:19], s30 offen sc1",
      "s_lshl_b32 s30, s2, 7", f"s_add_u32 s30, s30, {hex(WS_CN)}", "s_mov_b64 exec, 1", "buffer_store_dword v2, v2, s[16:19], s30 offen sc1", "s_mov_b64 exec, -1")
def e1flag():
    e("s_lshl_b32 s30, s2, 3", f"s_add_u32 s30, s30, {hex(WS_E1T)}", "s_mov_b64 exec, 1", "s_waitcnt vmcnt(0)",
      "buffer_store_dwordx2 v[40:41], v2, s[16:19], s30 offen sc1", "s_mov_b64 exec, -1")
def e1_issue():
    e("v_lshlrev_b32 v19, 5, v0", f"s_mov_b32 s54, {hex(WS_E1T)}",
      "buffer_load_dwordx4 v[40:43], v19, s[16:19], s54 offen sc1", "buffer_load_dwordx4 v[44:47], v19, s[16:19], s54 offen offset:16 sc1")
def e1_check(sleep=1):
    lp, ld = a.newlab(), a.newlab()
    e(f"s_mov_b32 s39, {SPIN}")
    a.lab(lp)
    e("s_waitcnt vmcnt(0)", "v_xor_b32 v4, s52, v41", "v_xor_b32 v5, s52, v43", "v_xor_b32 v6, s52, v45", "v_xor_b32 v7, s52, v47",
      "v_or_b32 v4, v4, v5", "v_or3_b32 v4, v4, v6, v7", "v_cmp_ne_u32 vcc, 0, v4", f"s_cbranch_vccz {ld}", f"s_sleep {sleep}",
      "buffer_load_dwordx4 v[40:43], v19, s[16:19], s54 offen sc1", "buffer_load_dwordx4 v[44:47], v19, s[16:19], s54 offen offset:16 sc1",
      "s_sub_u32 s39, s39, 1", f"s_cbranch_scc0 {lp}")
    a.lab(ld)
    e("s_waitcnt vmcnt(0)")
def e1_idx():
    e("v_max_u32 v40, v40, v42", "v_max3_u32 v40, v40, v44, v46")
    a.wave_allreduce([40], [41], op="v_max_u32")
    e("s_nop 0", "v_readfirstlane_b32 s55, v40", "s_nop 3", "s_and_b32 s55, s55, 0x7ff", "s_sub_u32 s55, 2047, s55")
def st2_loads():
    e("s_lshl_b32 s31, s28, 11", f"s_add_u32 s31, s31, {hex(WS_ST)}",
      "buffer_load_dwordx4 v[48:51], v2, s[16:19], s31 offen sc1", "buffer_load_dwordx4 v[52:55], v2, s[16:19], s31 offen offset:1024 sc1",
      "s_lshl_b32 s30, s55, 4", f"s_add_u32 s30, s30, {hex(WS_ST)}", "v_mov_b32 v4, 0", "buffer_load_dwordx4 v[56:59], v4, s[16:19], s30 offen sc1")
def st2_use():
    e("v_lshlrev_b32 v4, 3, v0", f"v_add_u32 v4, {L_ST2}, v4", "ds_write_b64 v4, v[48:49]", "ds_write_b64 v4, v[52:53] offset:512")
    bf16r(58); sigmoid(58); bf16r(58)
    e("v_mov_b32 v59, s55", f"v_mov_b32 v4, {L_MISC}", "ds_write_b64 v4, v[58:59]")
def zero_flags():
    e(f"v_mov_b32 v4, {L_FLG}", "v_mov_b32 v8, 0", "v_mov_b32 v9, 0", "v_mov_b32 v10, 0", "v_mov_b32 v11, 0",
      "ds_write_b128 v4, v[8:11]", "ds_write_b128 v4, v[8:11] offset:16", "ds_write_b128 v4, v[8:11] offset:32")
a.lab("L_service")
e("s_sub_u32 s26, s25, 6")
if P("CPF", 1):
    e("s_getpc_b64 s[30:31]")
    a.lab("L_pc")
    e(f"s_sub_u32 s30, s30, L_pc-{K}", "s_subb_u32 s31, s31, 0", "s_lshl_b32 s32, s21, 1", "s_add_u32 s32, s32, s26", "s_lshl_b32 s32, s32, 9",
      "v_lshlrev_b32 v3, 7, v0", "v_add_u32 v3, s32, v3", f"v_min_u32 v3, L_end-{K}, v3", "s_mov_b64 exec, 15", "global_load_dword v245, v3, s[30:31]", "s_mov_b64 exec, -1")
TLBW = P("TLBW", 0)
if TLBW:
    l = a.newlab()
    e("s_cmp_lg_u32 s26, 1", f"s_cbranch_scc1 {l}", f"s_lshl_b32 s30, s21, {TLBW}", "v_mov_b32 v3, s30", "s_mov_b64 exec, 1")
    for pr, sz in ((74, 7340032), (76, 7340032), (78, 7340032), (84, 0x200000), (80, 0x400000), (82, 0x600000)):
        e(f"v_min_u32 v4, {sz-4}, v3", f"global_load_dword v243, v4, s[{pr}:{pr+1}]")
    e("s_mov_b64 exec, -1")
    a.lab(l)
e("s_cmp_eq_u32 s57, 1", "s_cbranch_scc1 L_moe_b")
a.srd(40, 84, 0x200000)
zero_flags()
e("s_waitcnt lgkmcnt(0)", "s_add_u32 s52, s52, 1")
def only(w, f):
    l = a.newlab()
    e(f"s_cmp_lg_u32 s26, {w}", f"s_cbranch_scc1 {l}"); f(); a.lab(l)
def both(f6, f7):
    l7, lj = a.newlab(), a.newlab()
    e("s_cmp_lg_u32 s26, 0", f"s_cbranch_scc1 {l7}"); f6(); e(f"s_branch {lj}"); a.lab(l7); f7(); a.lab(lj)
def rg(n): return 64 + 4*n
regs7 = [rg(4*sec)+c for sec in range(3) for c in range(4)]
def c6():
    e1_idx(); st2_loads()
    l = a.newlab()
    e("s_mul_i32 s30, s22, 2560", f"s_add_u32 s30, s30, {hex(WS_ST)}",
      "buffer_load_dwordx2 v[20:21], v2, s[16:19], s30 offen sc1", "buffer_load_dwordx2 v[22:23], v2, s[16:19], s30 offen offset:1024 sc1",
      "buffer_load_dwordx2 v[24:25], v2, s[16:19], s30 offen offset:2048 sc1",
      "s_cmp_lg_u32 s2, 0", f"s_cbranch_scc1 {l}", f"s_mov_b32 s30, {hex(WS_EP)}", "v_mov_b32 v6, s52", "s_mov_b64 exec, 1",
      "buffer_store_dword v6, v4, s[16:19], s30 offen sc1", "s_mov_b64 exec, -1")
    a.lab(l)
def c7():
    e("v_lshrrev_b32 v4, 4, v0", "v_mul_u32_u24 v4, 12288, v4", "v_and_b32 v5, 15, v0", "v_lshlrev_b32 v5, 4, v5", "v_add_u32 v4, v4, v5",
      "s_lshl_b32 s30, s23, 8", f"s_add_u32 s30, s30, {hex(WS_CSP)}")
    for n in range(12):
        e(f"s_add_u32 s31, s30, {(n>>2)*4096 + (n&3)*49152}")
        if QSW and n < 4: e("s_xor_b32 s31, s31, 256")
        e(f"buffer_load_dwordx4 v[{rg(n)}:{rg(n)+3}], v4, s[16:19], s31 offen sc1")
def u6a():
    e("v_mul_f32 v20, v20, v21", "v_mul_f32 v22, v22, v23", "v_mul_f32 v24, v24, v25", "v_lshlrev_b32 v4, 2, v0", f"v_add_u32 v4, {L_INV}, v4",
      "ds_write_b32 v4, v21", "ds_write_b32 v4, v23 offset:256", "ds_write_b32 v4, v20 offset:640", "ds_write_b32 v4, v22 offset:896",
      "s_mov_b32 exec_hi, 0", "ds_write_b32 v4, v25 offset:512", "ds_write_b32 v4, v24 offset:1152", "s_mov_b64 exec, -1")
def u7a():
    for sec in range(3):
        for n in range(1, 4):
            for c in range(4): e(f"v_add_f32 v{rg(4*sec)+c}, v{rg(4*sec)+c}, v{rg(4*sec+n)+c}")
def u7s(sw):
    for k, r in enumerate(regs7): e(f"v_mov_b32 v{20+k}, v{r}")
    for k, r in enumerate(regs7): e(f"{sw} v{r}, v{20+k}")
    for k, r in enumerate(regs7): e(f"v_add_f32 v{r}, v{r}, v{20+k}")
def u7c():
    u7s("v_permlane32_swap_b32")
    e("v_bfe_u32 v4, v0, 3, 1", "v_lshlrev_b32 v4, 7, v4", "v_and_b32 v5, 7, v0", "v_lshlrev_b32 v5, 2, v5", "v_add_u32 v4, v4, v5", f"v_add_u32 v4, {L_CS}, v4")
    for sec in range(3):
        for c in range(4): e(f"ds_write_b32 v4, v{rg(4*sec)+c} offset:{256*sec + 32*c}")
def wo_pf():
    e("s_lshl_b32 s30, s21, 7", "s_lshl_b32 s31, s26, 6", "s_add_u32 s30, s30, s31", "v_add_u32 v4, s30, v0",
      "v_and_b32 v5, 7, v4", "v_lshlrev_b32 v5, 7, v5", "v_lshrrev_b32 v4, 3, v4", "v_lshlrev_b32 v4, 11, v4", "v_add_u32 v4, v4, v5",
      "s_lshl_b32 s30, s24, 10")
    for q in range(3): e("buffer_load_dword v244, v4, s[40:43], s30 offen", "s_add_u32 s30, s30, 0xC0000")
def hot_pf(s0, per):
    e(f"s_mul_i32 s30, s21, {per}", f"s_add_u32 s30, s30, {192*s0}", "v_add_u32 v4, s30, v0", "v_lshlrev_b32 v4, 11, v4",
      f"v_cmp_gt_u32 vcc, {per}, v0", f"v_mov_b32 v5, {hex(BIG)}", "s_lshr_b32 s31, s20, 1", "s_lshl_b32 s31, s31, 9", "s_add_u32 s31, s31, 384", "v_cndmask_b32 v4, v5, v4, vcc",
      "s_bitcmp1_b32 s20, 1", "s_cselect_b32 s31, 0x600000, s31", "buffer_load_dword v244, v4, s[12:15], s31 offen")
fixed = {0: [lambda: only(0, act0)], 1: [lambda: only(0, e1flag)], SE: [e1_issue], SE+1: [e1_check, lambda: both(c6, c7)],
         SE+3: [lambda: e("s_waitcnt vmcnt(0)"), lambda: both(u6a, u7a)], SE+4: [lambda: both(st2_use, lambda: u7s("v_permlane16_swap_b32"))],
         SE+5: [lambda: only(1, u7c), lambda: e("s_waitcnt lgkmcnt(0)")], P("TWO", 14): [wo_pf]}
def pfA(s0):
    e("s_mul_i32 s30, s24, 960", "s_mul_i32 s31, s21, 44", "s_add_u32 s30, s30, s31", "v_lshrrev_b32 v4, 2, v0", "v_add_u32 v4, s30, v4", "v_lshlrev_b32 v4, 11, v4",
      "v_and_b32 v5, 3, v0", "v_lshlrev_b32 v5, 7, v5", "v_add_u32 v4, v4, v5", f"s_mov_b32 s30, {128*s0}",
      "buffer_load_dword v244, v4, s[8:11], s30 offen", "s_add_u32 s30, s30, 32768", "buffer_load_dword v244, v4, s[8:11], s30 offen", "s_add_u32 s30, s30, 32768",
      "s_mov_b32 exec_hi, 0xffff", "buffer_load_dword v244, v4, s[8:11], s30 offen", "s_mov_b64 exec, -1")
def pfB(s0):
    e("s_mul_i32 s30, s21, 30", f"s_add_u32 s30, s30, {192*s0}", "v_lshrrev_b32 v4, 2, v0", "v_add_u32 v4, s30, v4", "v_lshlrev_b32 v4, 11, v4",
      "v_and_b32 v5, 3, v0", "v_lshlrev_b32 v5, 7, v5", "v_add_u32 v4, v4, v5", "s_lshr_b32 s30, s20, 1", "s_lshl_b32 s30, s30, 9",
      "buffer_load_dword v244, v4, s[12:15], s30 offen", "s_add_u32 s30, s30, 32768",
      "s_mov_b32 exec_hi, 0xffffff", "buffer_load_dword v244, v4, s[12:15], s30 offen", "s_mov_b64 exec, -1")
PFM = P("PFM", 3)
for it in [x for x in os.environ.get("PF", "").split(",") if x]:
    t, s0 = [int(v) for v in it.split(":")]
    fixed.setdefault(t, []).append(lambda s0=s0: both((lambda: pfA(s0)) if PFM & 1 else (lambda: None), (lambda: pfB(s0)) if PFM & 2 else (lambda: None)))
HP = os.environ.get("HP", "0:2:24,2:5:24,5:8:24,8:11:24,11:14:24")
for it in [x for x in HP.split(",") if x]:
    t, s0, per = [int(v) for v in it.split(":")]
    fixed.setdefault(t, []).append(lambda s0=s0, per=per: only(1, lambda: hot_pf(s0, per)))
SST = P("SST", 0)
for t in range(17):
    e("s_barrier")
    if SST and t >= 2:
        r = 88 + 2*(t-2) if t < 9 else 56 + 2*(t-9)
        e(f"s_memtime s[{r}:{r+1}]")
    for f in fixed.get(t, []): f()
if SST:
    e("s_cmp_lg_u32 s25, 6", "s_cbranch_scc1 L_nosst", "s_waitcnt lgkmcnt(0)", "s_mul_i32 s30, s2, 128", "s_add_u32 s30, s30, 0x0F100000")
    e("v_mov_b32 v4, 0")
    for g in range(8):
        src = [86+4*g+q if g < 4 else 56+4*(g-4)+q for q in range(4)]
        for q in range(4): e(f"v_mov_b32 v{8+q}, s{src[q]}")
        e("s_mov_b64 exec, 1", f"buffer_store_dwordx4 v[8:11], v4, s[16:19], s30 offen offset:{16*g}", "s_mov_b64 exec, -1", "s_waitcnt vmcnt(0)")
    a.lab("L_nosst")
e("s_waitcnt vmcnt(0)", "s_branch L_phase2")

a.lab("L_moe_a")
e("s_setprio 0", "s_waitcnt vmcnt(0)")
a.lab("L_moe_b")
e("s_waitcnt lgkmcnt(0)", "s_add_u32 s52, s52, 1", "s_barrier",
  "s_and_b32 s48, s58, 1", "s_lshr_b32 s49, s58, 4", "s_lshr_b32 s50, s58, 1",
  "s_mul_i32 s51, s50, 56", "s_mul_i32 s51, s51, 21846", "s_lshr_b32 s51, s51, 16",
  "s_cmp_eq_u32 s48, 0", "s_cselect_b32 s40, s74, s76", "s_cselect_b32 s41, s75, s77", "s_and_b32 s41, s41, 0xffff", "s_mov_b32 s42, 7340032", "s_mov_b32 s43, 0x20000")
a.srd(44, 78, 7340032)
if P("NOMOE", 0): e("s_mov_b32 s42, 0", "s_mov_b32 s46, 0")
e("v_lshrrev_b32 v1, 3, v0", "v_and_b32 v3, 7, v0", "v_lshlrev_b32 v3, 4, v3", "s_cmp_eq_u32 s25, 7", "s_cbranch_scc1 L_moe7")
MW, MX = 64, 20
e("v_mul_u32_u24 v16, 7168, v1", "v_add_u32 v16, v16, v3",
  "s_and_b32 s27, s50, 7", "s_mul_i32 s27, s27, 7", "s_add_u32 s27, s27, s25",
  "s_mul_i32 s53, s49, 2465792", "s_lshl_b32 s30, s27, 7", "s_add_u32 s53, s53, s30")
if P("M0B", 1): e("s_barrier")
for n in range(43): e(f"buffer_load_dwordx4 v[{MW+4*n}:{MW+4*n+3}], v16, s[40:43], s53 offen {WNT}", "s_add_u32 s53, s53, 57344")
e("v_mov_b32 v9, 0xffff"); onehot(240, 8, 9)
e("v_mul_u32_u24 v17, 176, v1", f"v_add_u32 v17, {L_XS}, v17", "s_barrier")
for q in range(11): e(f"ds_read_b128 v[{MX+4*q}:{MX+4*q+3}], v17 offset:{16*q}")
e("s_waitcnt lgkmcnt(0)")
def mgemv(cnt):
    for n in range(cnt):
        b = 12 + 4*(n & 1)
        for q in range(4): e(f"v_and_b32 v{b+q}, v{MX+n}, v{240+q}")
        e(f"s_waitcnt vmcnt({cnt-1-n})", "s_nop 0", f"v_mfma_f32_16x16x32_bf16 v[8:11], v[{MW+4*n}:{MW+4*n+3}], v[{b}:{b+3}], " + ("0" if n == 0 else "v[8:11]"))
    e("v_lshrrev_b32 v16, 4, v0", "v_lshlrev_b32 v16, 7, v16", "v_add_u32 v16, v16, v3", "s_nop 5")
    for c in range(4): e(f"v_mov_b32 v{12+c}, v{8+c}")
    for c in range(4): e(f"v_permlane32_swap_b32 v{8+c}, v{12+c}")
    for c in range(4): e(f"v_add_f32_dpp v{8+c}, v{12+c}, v{8+c} row_ror:8 row_mask:0xf bank_mask:0xf")
mgemv(43)
stamp("gumath")
e("s_mul_i32 s30, s49, 28672", "s_mul_i32 s31, s48, 14336", "s_add_u32 s30, s30, s31", "s_lshl_b32 s31, s27, 8", "s_add_u32 s30, s30, s31", f"s_add_u32 s30, s30, {hex(WS_GU)}",
  "s_mov_b32 exec_lo, 0x00ff00ff", "s_mov_b32 exec_hi, 0", "buffer_store_dwordx4 v[8:11], v16, s[16:19], s30 offen sc1", "s_mov_b64 exec, -1",
  "s_lshl_b32 s30, s27, 7", f"s_add_u32 s30, s30, {hex(C_G)}")
arrive(30)
stamp("gupub")
e("s_branch L_moe_d")
a.lab("L_moe7")
e("s_setprio 3"); act0(); e1flag()
if P("M0B", 1): e("s_barrier")
if P("E1D", 80): e(f"s_sleep {P('E1D', 80)}")
e1_issue(); e1_check(P("E1S", 32)); e1_idx(); st2_loads()
e("s_lshl_b32 s30, s55, 11", "s_mul_i32 s31, s49, 688", "s_add_u32 s30, s30, s31", "buffer_load_dwordx4 v[20:23], v2, s[8:11], s30 offen", "s_waitcnt vmcnt(0)")
for q in range(4): e(f"v_lshlrev_b32 v{24+2*q}, 16, v{20+q}", f"v_and_b32 v{25+2*q}, 0xffff0000, v{20+q}")
for q in range(8): e(f"v_add_f32 v{24+q}, v{24+q}, v56")
for q in range(8): bf16r(24+q)
for q in range(8): e(f"v_mul_f32 v{24+q}, v{24+q}, v57")
for q in range(8): e(f"v_cvt_pk_bf16_f32 v{24+q}, v{24+q}, v{24+q}")
e("v_lshlrev_b32 v4, 2, v0", f"v_add_u32 v4, {L_XS}, v4", "s_mov_b32 exec_hi, 0xfff")
for q in range(8): e(f"ds_write_b32 v4, v{24+q} offset:{176*q}")
e("s_mov_b64 exec, -1")
st2_use()
e("v_mov_b32 v9, 0xffff"); onehot(240, 8, 9)
e("s_waitcnt lgkmcnt(0)", "s_barrier")
a.lab("L_moe_d")
e("v_lshlrev_b32 v17, 11, v1", "v_add_u32 v17, v17, v3", "s_lshl_b32 s27, s48, 3", "s_add_u32 s27, s27, s25",
  "s_lshl_b32 s30, s51, 14", "s_lshl_b32 s31, s27, 7", "s_add_u32 s30, s30, s31", "s_cmp_lt_u32 s25, 3", "s_cbranch_scc1 L_moe_h")
for n in range(19): e(f"buffer_load_dwordx4 v[{MW+4*n}:{MW+4*n+3}], v17, s[44:47], s30 offen {WNT}", "s_add_u32 s30, s30, 16384")
e("s_branch L_moe_e")
a.lab("L_moe_h")
e("s_lshr_b32 s33, s51, 3", "s_add_u32 s34, s51, 18", "s_lshr_b32 s34, s34, 3", "s_sub_u32 s34, s34, s33",
  "v_cmp_ge_u32 s[36:37], s34, v0", "v_and_b32 v12, 7, v0",
  "v_lshlrev_b32 v13, 7, v0", "s_lshl_b32 s33, s33, 7", f"s_add_u32 s33, s33, {hex(C_G)}")
poll(14, 13, 33, "s[36:37]", 6, sleep=P("SLG", 8))
stamp("gupoll")
e("s_lshl_b32 s33, s25, 3", "v_add_u32 v13, s33, v1", "v_add_u32 v14, s51, v13", "v_min_u32 v14, 447, v14",
  "v_lshrrev_b32 v15, 2, v14", "v_lshlrev_b32 v15, 7, v15", "v_and_b32 v14, 3, v14", "v_lshlrev_b32 v14, 2, v14", "v_add3_u32 v14, v14, v15, v3",
  f"s_mov_b32 s33, {hex(WS_GU)}")
for s in range(6): e(f"buffer_load_dword v{20+s}, v14, s[16:19], s33 offen sc1", "s_add_u32 s33, s33, 14336")
for n in range(19): e(f"buffer_load_dwordx4 v[{MW+4*n}:{MW+4*n+3}], v17, s[44:47], s30 offen {WNT}", "s_add_u32 s30, s30, 16384")
e("s_mul_i32 s33, s50, 21846", "s_lshr_b32 s33, s33, 16", "s_mul_i32 s33, s33, 3", "s_cmp_eq_u32 s33, s50", "s_cselect_b32 s33, 18, 19",
  "s_waitcnt vmcnt(19)", "v_add_f32 v20, v20, v22", "v_add_f32 v21, v21, v23", "v_add_f32 v20, v20, v24", "v_add_f32 v21, v21, v25")
bf16r(20); bf16r(21)
e("v_mov_b32 v22, v20"); sigmoid(22); e("v_mul_f32 v20, v20, v22"); bf16r(20)
e("v_mul_f32 v20, v20, v21", "v_cmp_gt_u32 vcc, s33, v13", "v_cvt_pk_bf16_f32 v20, v20, v20", "v_mul_u32_u24 v14, 96, v12", "v_cndmask_b32 v20, 0, v20, vcc",
  "v_lshlrev_b32 v13, 2, v13", "v_add_u32 v14, v14, v13", f"v_add_u32 v14, {L_HS}, v14", "ds_write_b32 v14, v20")
a.lab("L_moe_e")
e("v_mul_u32_u24 v17, 96, v1", f"v_add_u32 v17, {L_HS}, v17", "s_waitcnt lgkmcnt(0)", "s_barrier")
for q in range(5): e(f"ds_read_b128 v[{MX+4*q}:{MX+4*q+3}], v17 offset:{16*q}")
e("s_waitcnt lgkmcnt(0)")
mgemv(19)
e("s_lshl_b32 s30, s50, 12", "s_lshl_b32 s31, s27, 8", "s_add_u32 s30, s30, s31", f"s_add_u32 s30, s30, {hex(WS_YP)}",
  "s_mov_b32 exec_lo, 0x00ff00ff", "s_mov_b32 exec_hi, 0", "buffer_store_dwordx4 v[8:11], v16, s[16:19], s30 offen sc1", "s_mov_b64 exec, -1",
  "s_lshl_b32 s30, s27, 7", f"s_add_u32 s30, s30, {hex(C_Y)}")
arrive(30)
stamp("ypub")
e("s_and_b32 s30, s25, 6", "s_cmp_eq_u32 s30, 4", "s_cbranch_scc1 L_wo")

a.lab("L_phase2")
stamp("p2in")
a.srd(40, 80, 0x400000)
e("s_and_b32 s26, s25, 3", "s_lshr_b32 s27, s25, 2",
  "s_lshl_b32 s30, s28, 3", "s_lshl_b32 s31, s26, 1", "s_add_u32 s30, s30, s31", "s_lshl_b32 s33, s30, 15",
  "s_lshl_b32 s31, s27, 14", "s_add_u32 s33, s33, s31",
  "s_and_b32 s34, s29, 7", "s_lshl_b32 s34, s34, 1",
  "s_add_u32 s30, s30, s27", "s_lshl_b32 s30, s30, 4", "v_and_b32 v247, 15, v0", "v_add_u32 v246, s30, v247", "v_lshlrev_b32 v246, 11, v246",
  "v_bfe_u32 v1, v0, 4, 1", "v_lshlrev_b32 v1, 5, v1", "v_lshrrev_b32 v3, 5, v0", "v_lshlrev_b32 v3, 4, v3", "v_add_u32 v1, v1, v3",
  "s_lshl_b32 s31, s29, 7", "v_add3_u32 v246, v246, v1, s31",
  "buffer_load_dwordx4 v[248:251], v246, s[8:11], 0 offen", "buffer_load_dwordx4 v[252:255], v246, s[8:11], 0 offen offset:64",
  "s_and_b32 s30, s30, 127", "v_add_u32 v247, s30, v247",
  "v_lshlrev_b32 v4, 3, v247", f"v_add_u32 v4, {L_ST2}, v4", f"v_mov_b32 v5, {L_MISC}", "ds_read_b64 v[240:241], v4", "ds_read_b64 v[242:243], v5",
  "v_lshlrev_b32 v245, 1, v1",
  "s_lshl_b32 s31, s27, 15", "v_add_u32 v12, s31, v2", "v_xor_b32 v3, 32768, v12",
  "v_and_b32 v4, 60, v0", "v_lshlrev_b32 v4, 5, v4", "v_bfe_u32 v5, v0, 3, 2", "v_lshlrev_b32 v5, 5, v5", "v_add_u32 v4, v4, v5",
  "v_and_b32 v5, 3, v0", "v_lshlrev_b32 v5, 3, v5", "v_add_u32 v4, v4, v5", "s_lshl_b32 s31, s27, 16", "v_add_u32 v4, s31, v4",
  "v_xor_b32 v5, 32, v4", "v_xor_b32 v6, 64, v4", "v_xor_b32 v7, 96, v4")
for n in range(16): e(f"s_add_u32 s{56+n}, s34, {n}", f"s_and_b32 s{56+n}, s{56+n}, 15", f"s_lshl_b32 s{56+n}, s{56+n}, 10", f"s_add_u32 s{56+n}, s{56+n}, s33")
e("s_waitcnt lgkmcnt(0)", "v_readfirstlane_b32 s55, v243", "v_mov_b32 v244, v241", "s_cmp_lg_u32 s25, 0", "s_cbranch_scc1 L_y1")
e("v_lshlrev_b32 v8, 7, v0", "s_mul_i32 s30, s28, 1640", "s_lshr_b32 s31, s30, 10", "s_add_u32 s30, s30, 1435", "s_lshr_b32 s30, s30, 10",
  "s_sub_u32 s30, s30, s31", "s_add_u32 s30, s30, 1", "s_lshl_b32 s30, s30, 3", "s_lshl_b32 s31, s28, 9", f"s_add_u32 s31, s31, {hex(C_O)}")
if P("DLO", 8): e(f"s_sleep {P('DLO', 8)}")
poll(9, 8, 31, "15", "s30", sleep=P("SLO", 2))
a.lab("L_y1")
e(f"s_setprio {P('PR2A', 0)}", "s_cmp_lt_u32 s25, 4", "s_cbranch_scc1 L_y1b", f"s_setprio {P('PR2B', 0)}")
a.lab("L_y1b")
e("s_barrier")
stamp("y1")
PD = P("PD", 4)
def oload(n):
    return [f"buffer_load_dwordx4 v[{64+8*n}:{67+8*n}], v12, s[16:19], s{56+n} offen sc1", f"buffer_load_dwordx4 v[{68+8*n}:{71+8*n}], v3, s[16:19], s{56+n} offen sc1"]
for n in range(PD): e(*oload(n))
F2 = [192, 208, 224]
def reads2(n):
    R = []
    for cb in range(4):
        f = F2[n % 3] + 4*cb
        R += [f"ds_read_b64_tr_b16 v[{f}:{f+1}], v{4+cb} offset:{n*4096}", f"ds_read_b64_tr_b16 v[{f+2}:{f+3}], v{4+cb} offset:{n*4096+2048}"]
    return R
e(*reads2(0)); e(*reads2(1))
for n in range(16):
    if n + PD < 16: e(*oload(n + PD))
    R = reads2(n+2) if n < 14 else []
    e(f"s_waitcnt vmcnt({2*min(PD, 15-n)}) lgkmcnt({8 if n < 15 else 0})")
    q = 0
    for cb in range(4):
        for rb in range(2):
            d = 16 + (rb*4+cb)*4; f = F2[n % 3] + 4*cb
            e(f"v_mfma_f32_16x16x32_bf16 v[{d}:{d+3}], v[{f}:{f+3}], v[{64+8*n+4*rb}:{67+8*n+4*rb}], " + ("0" if n == 0 else f"v[{d}:{d+3}]"))
            if q < len(R): e(R[q])
            q += 1
stamp("g2end")
e("s_lshl_b32 s30, s25, 12", f"s_add_u32 s30, s30, {S}", "v_add_u32 v4, s30, v2", "v_xor_b32 v5, 16384, v4",
  "s_lshr_b32 s30, s55, 7", "s_cmp_eq_u32 s30, s28", "s_cselect_b32 s56, 1, 0", "s_nop 1")
for cb in range(4): e(f"ds_write_b128 v4, v[{32+4*cb}:{35+4*cb}] offset:{cb*1024}")
e("s_cmp_eq_u32 s56, 1", "s_cbranch_scc1 L_sel")
def final(sel):
    if sel:
        l = a.newlab()
        e("s_cmp_lg_u32 s25, 6", f"s_cbranch_scc1 {l}", "s_lshl_b32 s30, s29, 7", f"s_add_u32 s30, s30, {hex(C_Y)}")
        poll(9, 2, 30, "1", 24)
        e("v_lshrrev_b32 v8, 4, v0", "v_lshlrev_b32 v8, 12, v8", "v_and_b32 v9, 15, v0", "v_lshlrev_b32 v9, 4, v9", "v_add_u32 v8, v8, v9",
          "s_lshl_b32 s30, s29, 8", f"s_add_u32 s30, s30, {hex(WS_YP)}")
        for n in range(6): e(f"buffer_load_dwordx4 v[{64+4*n}:{67+4*n}], v8, s[16:19], s30 offen sc1", "s_add_u32 s30, s30, 16384")
        e("v_bfe_u32 v9, v0, 3, 1", "v_lshlrev_b32 v9, 7, v9", "v_and_b32 v10, 7, v0", "v_lshlrev_b32 v10, 2, v10", "v_add_u32 v9, v9, v10", "s_waitcnt vmcnt(0)")
        for n in range(1, 6): e(f"v_pk_add_f32 v[64:65], v[64:65], v[{64+4*n}:{65+4*n}]", f"v_pk_add_f32 v[66:67], v[66:67], v[{66+4*n}:{67+4*n}]")
        for sw in ("v_permlane16_swap_b32", "v_permlane32_swap_b32"):
            for c in range(4): e(f"v_mov_b32 v{68+c}, v{64+c}")
            for c in range(4): e(f"{sw} v{64+c}, v{68+c}")
            for c in range(4): e(f"v_add_f32 v{64+c}, v{64+c}, v{68+c}")
        for c in range(4):
            bf16r(64+c); e(f"v_mul_f32 v{64+c}, v{64+c}, v242"); bf16r(64+c)
        a.lab(l)
    e("s_waitcnt lgkmcnt(0)", "s_barrier")
    stamp("y2")
    for cb in range(4): e(f"ds_read_b128 v[{32+4*cb}:{35+4*cb}], v5 offset:{cb*1024}")
    if sel:
        l = a.newlab()
        e("s_cmp_lg_u32 s25, 6", f"s_cbranch_scc1 {l}")
        for c in range(4): e(f"ds_write_b32 v9, v{64+c} offset:{32*c}")
        a.lab(l)
        e("s_waitcnt lgkmcnt(0)", "s_barrier")
        for pr in range(2): e(f"ds_read_b128 v[{96+8*pr}:{99+8*pr}], v245 offset:{128*pr}", f"ds_read_b128 v[{100+8*pr}:{103+8*pr}], v245 offset:{128*pr+16}")
        e("s_and_b32 s55, s55, 127", "v_cmp_eq_u32 vcc, s55, v247", "v_mov_b32 v14, 0", "v_mov_b32 v3, 1.0", "s_waitcnt lgkmcnt(0)", "v_cndmask_b32 v14, v14, v3, vcc")
    for cb in range(4):
        if not sel: e(f"s_waitcnt lgkmcnt({3-cb})")
        e(f"v_pk_add_f32 v[{16+4*cb}:{17+4*cb}], v[{16+4*cb}:{17+4*cb}], v[{32+4*cb}:{33+4*cb}]", f"v_pk_add_f32 v[{18+4*cb}:{19+4*cb}], v[{18+4*cb}:{19+4*cb}], v[{34+4*cb}:{35+4*cb}]",
          f"v_cvt_pk_bf16_f32 v{48+2*cb}, v{16+4*cb}, v{17+4*cb}", f"v_cvt_pk_bf16_f32 v{49+2*cb}, v{18+4*cb}, v{19+4*cb}")
    e("s_nop 1")
    for pr in range(2): e(f"v_permlane16_swap_b32 v{48+4*pr}, v{50+4*pr}", f"v_permlane16_swap_b32 v{49+4*pr}, v{51+4*pr}")
    e("s_waitcnt vmcnt(0)")
    for pr in range(2):
        for c in range(4):
            x = 248 + 4*pr + c; at = 48 + 4*pr + c
            e(f"v_lshlrev_b32 v8, 16, v{x}", f"v_and_b32 v9, 0xffff0000, v{x}",
              f"v_lshlrev_b32 v12, 16, v{at}", f"v_and_b32 v13, 0xffff0000, v{at}",
              f"v_pk_add_f32 v[10:11], v[8:9], v[240:241] {SH}",
              "v_pk_add_f32 v[8:9], v[8:9], v[12:13]",
              "v_cvt_pk_bf16_f32 v10, v10, v11", "v_cvt_pk_bf16_f32 v8, v8, v9",
              "v_and_b32 v11, 0xffff0000, v10", "v_lshlrev_b32 v10, 16, v10",
              "v_and_b32 v9, 0xffff0000, v8", "v_lshlrev_b32 v8, 16, v8",
              f"v_pk_mul_f32 v[10:11], v[10:11], v[244:245] {SH}",
              "v_cvt_pk_bf16_f32 v10, v10, v11", "v_and_b32 v11, 0xffff0000, v10", "v_lshlrev_b32 v10, 16, v10")
            if sel:
                e(f"v_fmac_f32 v10, v14, v{96+8*pr+2*c}", f"v_fmac_f32 v11, v14, v{97+8*pr+2*c}", "v_cvt_pk_bf16_f32 v10, v10, v11",
                  "v_and_b32 v11, 0xffff0000, v10", "v_lshlrev_b32 v10, 16, v10")
            e("v_pk_add_f32 v[8:9], v[8:9], v[10:11]", f"v_cvt_pk_bf16_f32 v{at}, v8, v9")
        e(f"buffer_store_dwordx4 v[{48+4*pr}:{51+4*pr}], v246, s[40:43], 0 offen offset:{64*pr} {OST}")
    stamp("fin")
    if STAMP: e("s_branch L_stamp")
    else: e("s_endpgm")
final(False)
a.lab("L_sel")
final(True)
if STAMP:
    a.lab("L_stamp")
    e("s_waitcnt vmcnt(0)", "s_memtime s[50:51]" if P("CYC", 0) else "s_memrealtime s[50:51]", f"s_cmp_lg_u32 s25, {STAMP-1}", "s_cbranch_scc1 L_end", "s_waitcnt lgkmcnt(0)",
      "s_mul_i32 s30, s2, 80", "s_add_u32 s30, s30, 0x0F000000")
    for q in range(16): e(f"v_mov_b32 v{4+q}, s{86+q}")
    e("v_mov_b32 v20, s50", "v_mov_b32 v21, s51", "v_mov_b32 v22, s50", "v_mov_b32 v23, s51", "v_mov_b32 v1, 0", "s_mov_b64 exec, 1")
    for q in range(5): e(f"buffer_store_dwordx4 v[{4+4*q}:{7+4*q}], v1, s[16:19], s30 offen offset:{16*q}")
a.lab("L_end"); e("s_endpgm")
a.raw('.section .rodata,"a"\n.p2align 6'); a.raw(kd(K, 256, 102))
sys.stdout.write(a.text())
```

```python
import sys, os
from lib import *
def P(n, d): return int(os.environ.get(n, d))
STAMP = P("STAMP", 0)
SE = P("SE", 6)
HOT = P("HOT", 0)
WNT = os.environ.get("WNT", "nt")
OST = os.environ.get("OST", "")
SPIN = 1 << 17
QSW = P("QSW", 1)
WS_OF, WS_KVP, WS_ZP, WS_ST, WS_CSP = 0x0, 0x400000, 0x500000, 0x510000, 0x520000
WS_GU, WS_YP = 0x560000, 0x580000
WS_E1T, WS_EP, WS_CN = 0x5A0000, 0x5A8000, 0x5B0000
C_K, C_O, C_G, C_Y = WS_CN, WS_CN + 32*128, WS_CN + 96*128, WS_CN + 160*128
WS_SIZE = 0x10000000
LOG2E, EPS6, EPS5 = 0x3FB8AA3B, 0x358637BD, 0x3727C5AC
BIG = 0x7ff00000
AB = 20480; STAGE = AB + 24576
S = 131072; T = 3*STAGE
L_INV, L_NB, L_CS, L_KEY, L_MISC, L_FLG, L_ST2 = T, T+640, T+1280, T+2048, T+2080, T+2112, T+2176
L_HS = T+3200
L_EXA, L_EXB, L_EX2, L_CST, L_XS = S, T+4096, S+16384, S+16384, T+4096
SH = "op_sel_hi:[1,0]"
a = Asm(); e = a.e
K = NAME + "_kernel"
a.raw("; @launch grid=(256,1,1) block=(512,1,1) lds=163840")
a.raw('.amdgcn_target "amdgcn-amd-amdhsa--gfx950"\n.text')
a.kernel_begin(K)
STK = os.environ.get("STK", "b0,g1end,kvpub,kvpoll,opub,y1,g2end").split(",")
def stamp(n):
    if not STAMP: return
    ins = "s_memtime" if P("CYC", 0) else "s_memrealtime"
    if n == 0: e(f"{ins} s[86:87]")
    elif n in STK:
        k = STK.index(n) + 1
        e(f"{ins} s[{86+2*k}:{87+2*k}]")
def bf16r(v): e(f"v_cvt_pk_bf16_f32 v{v}, v{v}, v{v}", f"v_and_b32 v{v}, 0xffff0000, v{v}")
def sigmoid(v): e(f"v_mul_f32 v{v}, {hex(LOG2E ^ 0x80000000)}, v{v}", f"v_exp_f32 v{v}, v{v}", "s_nop 0", f"v_add_f32 v{v}, 1.0, v{v}", f"v_rcp_f32 v{v}, v{v}", "s_nop 0")
def poll(vdst, voff, soff, mask, want, sleep=1):
    lp, ld = a.newlab("LP"), a.newlab("LD")
    e(f"s_mov_b64 exec, {mask}", f"s_mov_b32 s39, {SPIN}")
    a.lab(lp)
    e(f"v_mov_b32 v{vdst}, 0", f"buffer_atomic_add v{vdst}, v{voff}, s[16:19], s{soff} offen sc0 sc1", "s_waitcnt vmcnt(0)",
      f"v_cmp_ne_u32 vcc, {want}, v{vdst}", f"s_cbranch_vccz {ld}", f"s_sleep {sleep}", "s_sub_u32 s39, s39, 1", f"s_cbranch_scc0 {lp}")
    a.lab(ld)
    e("s_mov_b64 exec, -1")
def lds_wait(vt, vaddr, off, sleep=0):
    lp, ld = a.newlab("LW"), a.newlab("LE")
    e(f"s_mov_b32 s39, {SPIN*8}")
    a.lab(lp)
    e(f"ds_read_b32 v{vt}, v{vaddr} offset:{off}", "s_waitcnt lgkmcnt(0)", f"v_cmp_eq_u32 vcc, 0, v{vt}", f"s_cbranch_vccz {ld}")
    if sleep: e(f"s_sleep {sleep}")
    e("s_sub_u32 s39, s39, 1", f"s_cbranch_scc0 {lp}")
    a.lab(ld)
def onehot(dst, t0, t1):
    e(f"v_and_b32 v{t0}, 1, v0", f"v_lshlrev_b32 v{t0}, 4, v{t0}", f"v_lshlrev_b32 v{t0}, v{t0}, v{t1}", f"v_bfe_u32 v{t1}, v0, 1, 2")
    for q in range(4): e(f"v_cmp_eq_u32 vcc, {q}, v{t1}", "s_nop 1", f"v_cndmask_b32 v{dst+q}, 0, v{t0}, vcc")
def arrive(soff, voff=2, mask="1"):
    e("v_mov_b32 v5, 1", f"s_mov_b64 exec, {mask}", "s_waitcnt vmcnt(0)", f"buffer_atomic_add v5, v{voff}, s[16:19], s{soff} offen sc1", "s_mov_b64 exec, -1")

stamp(0)
e("s_cmp_ge_u32 s2, 256", "s_cbranch_scc1 L_end")
e("s_load_dwordx4 s[4:7], s[0:1], 0", "s_load_dwordx8 s[72:79], s[0:1], 32", "s_load_dwordx2 s[80:81], s[0:1], 64",
  "s_load_dwordx2 s[82:83], s[0:1], 80", "s_load_dwordx2 s[84:85], s[0:1], 16")
e("s_and_b32 s20, s2, 7", "s_lshr_b32 s21, s2, 3", "s_and_b32 s24, s20, 1",
  "s_mul_i32 s23, s21, 43", "s_lshr_b32 s23, s23, 8", "s_mul_i32 s30, s23, 6", "s_sub_u32 s22, s21, s30",
  "s_lshl_b32 s30, s24, 1", "s_add_u32 s30, s30, s22", "s_mul_i32 s31, s24, 7", "s_add_u32 s22, s22, s31",
  "s_cmp_ge_u32 s21, 24", "s_cselect_b32 s22, 6, s22", "s_cselect_b32 s23, s30, s23",
  "s_cmp_ge_u32 s21, 26", "s_cselect_b32 s57, 1, 0",
  "s_lshr_b32 s31, s20, 1", "s_lshl_b32 s30, s31, 2", "s_add_u32 s23, s23, s30",
  "s_mul_i32 s58, s20, 6", "s_add_u32 s58, s58, s21", "s_sub_u32 s58, s58, 26",
  "s_and_b32 s28, s21, 3", "s_add_u32 s28, s28, s30",
  "s_lshl_b32 s29, s24, 3", "s_lshr_b32 s30, s21, 2", "s_add_u32 s29, s29, s30")
e("v_lshrrev_b32 v1, 6, v0", "v_and_b32 v0, 63, v0", "v_lshlrev_b32 v2, 4, v0", "v_readfirstlane_b32 s25, v1")
e("s_waitcnt lgkmcnt(0)")
e(f"s_mov_b32 s30, {hex(WS_EP)}", "s_load_dword s52, s[82:83], s30")
a.srd(8, 4, 0x400000); a.srd(12, 6, 0x600000); a.srd(16, 82, WS_SIZE)
e("s_cmp_ge_u32 s25, 6", "s_cbranch_scc1 L_service", "s_cmp_ge_u32 s25, 4", "s_cbranch_scc1 L_loader")

e("s_setprio 2")
a.srd(40, 72, 2048)
e("s_lshr_b32 s26, s25, 1", "s_and_b32 s27, s25, 1")
e("s_lshl_b32 s33, s2, 3", "s_lshl_b32 s31, s25, 1", "s_add_u32 s33, s33, s31", "s_lshl_b32 s30, s33, 11")
for q in range(4): e(f"buffer_load_dwordx4 v[{64+4*q}:{67+4*q}], v2, s[8:11], s30 offen offset:{q*1024}")
e("buffer_load_dwordx4 v[112:115], v2, s[40:43], 0 offen", "buffer_load_dwordx4 v[116:119], v2, s[40:43], 0 offen offset:1024")
e("v_lshrrev_b32 v1, 3, v0", "v_mul_u32_u24 v3, 6144, v1", "v_and_b32 v4, 7, v0", "v_lshlrev_b32 v4, 4, v4", "v_add_u32 v3, v3, v4",
  "s_lshr_b32 s30, s2, 4", "s_lshl_b32 s30, s30, 6", "s_lshl_b32 s31, s25, 4", "s_add_u32 s30, s30, s31", "s_mul_i32 s30, s30, 6144",
  "s_and_b32 s31, s2, 15", "s_mul_i32 s31, s31, 384", "s_add_u32 s30, s30, s31")
for n in range(2):
    for ln in range(3): e(f"buffer_load_dwordx4 v[{80+12*n+4*ln}:{83+12*n+4*ln}], v3, s[12:15], s30 offen offset:{128*ln}")
    if n == 0: e("s_add_u32 s30, s30, 49152")
NHOT = 0
if HOT:
    NHOT = 1
    e("s_mul_i32 s30, s21, 96", "s_mul_i32 s31, s25, 24", "s_add_u32 s30, s30, s31", "v_add_u32 v1, s30, v0", "v_lshlrev_b32 v1, 11, v1",
      "v_cmp_gt_u32 vcc, 24, v0", f"v_mov_b32 v4, {hex(BIG)}", "s_lshr_b32 s31, s20, 1", "s_lshl_b32 s31, s31, 9", "s_add_u32 s31, s31, 384", "v_cndmask_b32 v1, v4, v1, vcc",
      "s_bitcmp1_b32 s20, 1", "s_cselect_b32 s31, 0x600000, s31",
      "buffer_load_dword v63, v1, s[12:15], s31 offen")
e("v_mov_b32 v121, 0x3f80"); onehot(124, 120, 121)
e("s_mul_i32 s30, s26, 10240",
  "v_and_b32 v1, 15, v0", "v_lshrrev_b32 v5, 4, v0", "v_lshrrev_b32 v3, 1, v1", "v_xor_b32 v3, v3, v5",
  "v_lshlrev_b32 v3, 4, v3", "v_lshlrev_b32 v1, 7, v1", "v_add_u32 v1, v1, v3", "v_add_u32 v4, s30, v1",
  "v_xor_b32 v5, 64, v4", f"v_add_u32 v8, {2*STAGE}, v4", f"v_add_u32 v9, {2*STAGE}, v5")
e("v_lshrrev_b32 v1, 4, v0", "v_lshlrev_b32 v1, 10, v1", "v_bfe_u32 v6, v0, 2, 2", "v_lshlrev_b32 v3, 7, v6", "v_add_u32 v1, v1, v3",
  "v_lshrrev_b32 v6, 1, v6", "v_xor_b32 v6, s27, v6", "v_lshlrev_b32 v6, 1, v6", "v_bfe_u32 v3, v0, 4, 1", "v_or_b32 v6, v6, v3",
  "v_lshlrev_b32 v6, 5, v6", "v_add_u32 v1, v1, v6", "v_and_b32 v6, 3, v0", "v_lshlrev_b32 v6, 3, v6", "v_add_u32 v10, v1, v6")
for s in (2, 1, 0): e(f"v_add_u32 v{10+s}, {s*STAGE+AB}, v10")
for s in (2, 1, 0): e(f"v_xor_b32 v{13+s}, 32, v{10+s}")
e(f"s_waitcnt vmcnt({8+NHOT})")
for rw in range(2):
    for i in range(8): e(f"v_lshlrev_b32 v{16+16*rw+2*i}, 16, v{64+8*rw+i}", f"v_and_b32 v{17+16*rw+2*i}, 0xffff0000, v{64+8*rw+i}")
e("v_pk_add_f32 v[48:49], v[16:17], v[18:19]", "v_pk_add_f32 v[50:51], v[32:33], v[34:35]")
for i in range(2, 8): e(f"v_pk_add_f32 v[48:49], v[48:49], v[{16+2*i}:{17+2*i}]", f"v_pk_add_f32 v[50:51], v[50:51], v[{32+2*i}:{33+2*i}]")
e("v_add_f32 v48, v48, v49", "v_add_f32 v50, v50, v51")
a.wave_allreduce([48, 50], [49, 51])
e("v_mul_f32 v48, 0xba800000, v48", "v_mul_f32 v50, 0xba800000, v50")
e("v_mov_b32 v52, 0", "v_mov_b32 v53, 0", "v_mov_b32 v54, 0", "v_mov_b32 v55, 0")
for i in range(8):
    e(f"v_pk_add_f32 v[56:57], v[{16+2*i}:{17+2*i}], v[48:49] {SH}", f"v_pk_add_f32 v[58:59], v[{32+2*i}:{33+2*i}], v[50:51] {SH}",
      "v_pk_fma_f32 v[52:53], v[56:57], v[56:57], v[52:53]", "v_pk_fma_f32 v[54:55], v[58:59], v[58:59], v[54:55]")
e("v_add_f32 v52, v52, v53", "v_add_f32 v54, v54, v55")
a.wave_allreduce([52, 54], [53, 55])
e("v_mul_f32 v52, 0x3a800000, v52", "v_mul_f32 v54, 0x3a800000, v54")
for v in (48, 50, 52, 54): bf16r(v)
e(f"v_add_f32 v52, {hex(EPS5)}, v52", f"v_add_f32 v54, {hex(EPS5)}, v54"); bf16r(52); bf16r(54)
e("v_sqrt_f32 v52, v52", "v_sqrt_f32 v54, v54", "s_nop 0"); bf16r(52); bf16r(54)
e("v_rcp_f32 v52, v52", "v_rcp_f32 v54, v54")
for rw in range(2):
    b = 16 + 16*rw
    for i in range(8): e(f"v_pk_add_f32 v[{b+2*i}:{b+2*i+1}], v[{b+2*i}:{b+2*i+1}], v[{48+2*rw}:{49+2*rw}] {SH}")
    for i in range(8): e(f"v_cvt_pk_bf16_f32 v{64+8*rw+i}, v{b+2*i}, v{b+2*i+1}")
    for i in range(8): e(f"v_lshlrev_b32 v{b+2*i}, 16, v{64+8*rw+i}", f"v_and_b32 v{b+2*i+1}, 0xffff0000, v{64+8*rw+i}")
    for i in range(8): e(f"v_pk_mul_f32 v[{b+2*i}:{b+2*i+1}], v[{b+2*i}:{b+2*i+1}], v[{52+2*rw}:{53+2*rw}] {SH}")
    for i in range(8): e(f"v_cvt_pk_bf16_f32 v{64+8*rw+i}, v{b+2*i}, v{b+2*i+1}")
e("v_mov_b32 v49, 0", "v_mov_b32 v51, 0", f"s_waitcnt vmcnt({NHOT})")
for n in range(2):
    for ln in range(3): e(f"v_mfma_f32_16x16x32_bf16 v[{104+4*ln if ln < 2 else 128}:{107+4*ln if ln < 2 else 131}], v[{80+12*n+4*ln}:{83+12*n+4*ln}], v[124:127], " + ("0" if n == 0 else f"v[{104+4*ln if ln < 2 else 128}:{107+4*ln if ln < 2 else 131}]"))
for i in range(8): e(f"v_dot2_f32_bf16 v49, v{64+i}, v{112+i}, v49", f"v_dot2_f32_bf16 v51, v{72+i}, v{112+i}, v51")
e("s_mul_i32 s30, s25, 3072", f"s_add_u32 s30, s30, {L_CST}", "v_add_u32 v1, s30, v2",
  "ds_write_b128 v1, v[104:107]", "ds_write_b128 v1, v[108:111] offset:1024", "ds_write_b128 v1, v[128:131] offset:2048")
a.wave_allreduce([49, 51], [53, 55])
e("v_cmp_eq_u32 vcc, 1, v0", "v_mov_b32 v59, 0", "s_lshl_b32 s30, s33, 4", f"s_add_u32 s30, s30, {hex(WS_ST)}",
  "v_cndmask_b32 v56, v48, v50, vcc", "v_cndmask_b32 v57, v52, v54, vcc", "v_cndmask_b32 v58, v49, v51, vcc",
  "v_ashrrev_i32 v60, 31, v58", "v_or_b32 v60, 0x80000000, v60", "v_xor_b32 v60, v60, v58", "v_and_b32 v60, 0xfffff800, v60",
  "s_sub_u32 s31, 2047, s33", "v_sub_u32 v61, s31, v0", "v_or_b32 v60, v60, v61",
  "s_lshl_b32 s31, s25, 3", f"s_add_u32 s31, s31, {L_KEY}", "v_lshlrev_b32 v61, 2, v0", "v_add_u32 v61, s31, v61",
  "s_mov_b64 exec, 3",
  "buffer_store_dwordx4 v[56:59], v2, s[16:19], s30 offen sc1", "ds_write_b32 v61, v60",
  "s_mov_b64 exec, -1", "s_cmp_eq_u32 s57, 1", "s_cbranch_scc1 L_moe_a")

ACC = 16
FR = [136, 180]
def reads(s, k2, st):
    f = FR[st]; ab = 4 + k2 if s < 2 else 8 + k2; ao = (s & 1) * STAGE
    def rb(i): return [f"ds_read_b128 v[{f+4*i}:{f+4*i+3}], v{ab} offset:{ao + i*2048}"]
    def rt(c):
        base = 10 + s if (c & 1) == 0 else 13 + s
        o = (c >> 1) * 8192 + k2 * 4096
        return [f"ds_read_b64_tr_b16 v[{f+20+4*c}:{f+21+4*c}], v{base} offset:{o}", f"ds_read_b64_tr_b16 v[{f+22+4*c}:{f+23+4*c}], v{base} offset:{o+512}"]
    return rb(0) + rt(0) + rb(1) + rb(2) + rt(1) + rb(3) + rb(4) + rt(2) + rt(3) + rt(4) + rt(5)
def mfmas(st, zero=False):
    f = FR[st]; L = []
    for c in range(6):
        for r in range(5):
            d = ACC + (c*5 + r)*4
            A = f"v[{f+4*r}:{f+4*r+3}]"; B = f"v[{f+20+4*c}:{f+23+4*c}]"
            if c < 2: A, B = B, A
            L.append(f"v_mfma_f32_16x16x32_bf16 v[{d}:{d+3}], {A}, {B}, " + ("0" if zero else f"v[{d}:{d+3}]"))
    return L
st = 0
def step(s, snext, first=False):
    global st
    for k2 in range(2):
        e("s_waitcnt vmcnt(0) lgkmcnt(0)" if (first and k2 == 1) else "s_waitcnt lgkmcnt(0)")
        if k2 == 1:
            e("s_barrier"); R = reads(snext, 0, st ^ 1)
        else: R = reads(s, 1, st ^ 1)
        M = mfmas(st, first and k2 == 0)
        for q in range(30):
            e(M[q])
            if q < 17: e(R[q])
        st ^= 1
e("s_waitcnt lgkmcnt(0)", "s_barrier")
stamp("b0")
e(*reads(0, 0, 0))
step(0, 1, True)
e("s_mov_b32 s31, 0")
a.lab("L_cloop")
step(1, 2); step(2, 0); step(0, 1)
e("s_add_u32 s31, s31, 1", "s_cmp_lt_u32 s31, 5", "s_cbranch_scc1 L_cloop")
stamp("g1end")
TI, TN = 136, 156
EV = [176, 178, 12, 14]
PK, VB, KV, Z, ON = 180, 204, 228, 244, 252
e("s_waitcnt lgkmcnt(0)",
  "v_lshrrev_b32 v1, 4, v0", "v_lshlrev_b32 v1, 4, v1", "s_mul_i32 s30, s26, 320", f"s_add_u32 s30, s30, {L_INV}", "v_add_u32 v3, s30, v1",
  "v_and_b32 v4, 15, v0", "v_lshlrev_b32 v4, 2, v4", "s_lshl_b32 s31, s27, 7", f"s_add_u32 s31, s31, {L_CS}", "v_add_u32 v5, s31, v4",
  "v_add_u32 v6, s30, v4", "v_add_u32 v7, s31, v1")
for q in range(4): e(f"ds_read_b32 v{EV[q]}, v5 offset:{256*(1+(q>>1)) + 64*(q&1)}")
for r in range(5): e(f"ds_read_b128 v[{TI+4*r}:{TI+4*r+3}], v3 offset:{64*r}", f"ds_read_b128 v[{TN+4*r}:{TN+4*r+3}], v3 offset:{640+64*r}")
e(f"s_mov_b32 s34, {hex(LOG2E)}", f"s_mov_b32 s35, {hex(LOG2E)}", f"s_mov_b32 s36, {hex(EPS6)}",
  "s_lshl_b32 s37, s22, 1", "s_add_u32 s37, s37, s26", "s_cmp_eq_u32 s37, 25", "s_cselect_b32 s59, 0, -1")
for q in range(4): e(f"v_mov_b32 v{ON+q}, 0x3f803f80")
for b in (PK, PK+12, VB, VB+12): e(f"v_mov_b32 v{b+10}, 0", f"v_mov_b32 v{b+11}, 0")
e("s_add_u32 s52, s52, 1")
def phi2(r, dst, t):
    e(f"v_pk_mul_f32 v[{t}:{t+1}], v[{r}:{r+1}], s[34:35]",
      f"v_exp_f32_e64 v{t}, v{t} clamp", f"v_exp_f32_e64 v{t+1}, v{t+1} clamp",
      f"v_max_f32 v{r}, s36, v{r}", f"v_max_f32 v{r+1}, s36, v{r+1}",
      f"v_pk_add_f32 v[{t}:{t+1}], v[{t}:{t+1}], v[{r}:{r+1}]",
      f"v_cvt_pk_bf16_f32 v{dst}, v{t}, v{t+1}")
for rp in range(3):
    rows = (2*rp, 2*rp+1) if rp < 2 else (4,)
    for r in rows:
        e(f"s_waitcnt lgkmcnt({8-2*r})")
        for c in range(2, 6):
            d = ACC + (c*5+r)*4; cs = f"v[{EV[c-2]}:{EV[c-2]+1}]"
            e(f"v_pk_mul_f32 v[8:9], v[{TN+4*r}:{TN+4*r+1}], {cs} {SH}", f"v_pk_mul_f32 v[10:11], v[{TN+4*r+2}:{TN+4*r+3}], {cs} {SH}",
              f"v_pk_fma_f32 v[{d}:{d+1}], v[{d}:{d+1}], v[{TI+4*r}:{TI+4*r+1}], v[8:9]", f"v_pk_fma_f32 v[{d+2}:{d+3}], v[{d+2}:{d+3}], v[{TI+4*r+2}:{TI+4*r+3}], v[10:11]")
            if c < 4:
                o = PK + (c-2)*12 + rp*4 + (r & 1)*2
                phi2(d, o, 8); phi2(d+2, o+1, 10)
            else:
                o = VB + (c-4)*12 + rp*4 + (r & 1)*2
                e(f"v_cvt_pk_bf16_f32 v{o}, v{d}, v{d+1}", f"v_cvt_pk_bf16_f32 v{o+1}, v{d+2}, v{d+3}")
            if r >= 3: e(f"v_and_b32 v{o}, s59, v{o}", f"v_and_b32 v{o+1}, s59, v{o+1}")
    e("s_nop 1")
    for db in range(2):
        A = f"v[{PK+12*db+4*rp}:{PK+12*db+4*rp+3}]"
        for eb in range(2):
            d = KV + 8*eb + 4*db
            e(f"v_mfma_f32_16x16x32_bf16 v[{d}:{d+3}], {A}, v[{VB+12*eb+4*rp}:{VB+12*eb+4*rp+3}], " + ("0" if rp == 0 else f"v[{d}:{d+3}]"))
        d = Z + 4*db
        e(f"v_mfma_f32_16x16x32_bf16 v[{d}:{d+3}], {A}, v[{ON}:{ON+3}], " + ("0" if rp == 0 else f"v[{d}:{d+3}]"))
stamp("kvmfma")
e("s_lshl_b32 s38, s23, 1", "s_add_u32 s38, s38, s27",
  f"v_mov_b32 v4, {L_FLG}", "v_mov_b32 v10, 1", "s_lshl_b32 s31, s25, 2", "v_add_u32 v9, s31, v4", "v_xor_b32 v8, 8, v9",
  "s_lshl_b32 s33, s27, 11", f"s_add_u32 s33, s33, {L_EXA}", "v_add_u32 v1, s33, v2", "s_lshl_b32 s33, s27, 12", f"s_add_u32 s33, s33, {L_EXB}", "v_add_u32 v3, s33, v2",
  "s_lshl_b32 s30, s38, 4", "s_add_u32 s30, s30, s22", "s_lshl_b32 s31, s30, 11", "s_lshl_b32 s32, s26, 10", "s_add_u32 s31, s31, s32", f"s_add_u32 s31, s31, {hex(WS_KVP)}",
  "s_lshl_b32 s30, s30, 7", f"s_add_u32 s30, s30, {hex(WS_ZP)}",
  "s_lshl_b32 s32, s38, 7", f"s_add_u32 s32, s32, {hex(C_K)}",
  "s_cmp_eq_u32 s26, 0", "s_cbranch_scc1 L_wr0")
X = 136
e(f"ds_write_b128 v3, v[{KV}:{KV+3}]", f"ds_write_b128 v3, v[{KV+4}:{KV+7}] offset:1024", f"ds_write_b128 v3, v[{Z}:{Z+3}] offset:2048", f"ds_write_b128 v3, v[{Z+4}:{Z+7}] offset:3072",
  "ds_write_b32 v9, v10")
lds_wait(5, 8, 0)
e(f"ds_read_b128 v[{X}:{X+3}], v1", f"ds_read_b128 v[{X+4}:{X+7}], v1 offset:1024", "s_waitcnt lgkmcnt(0)")
for q in range(4): e(f"v_pk_add_f32 v[{KV+8+2*q}:{KV+9+2*q}], v[{KV+8+2*q}:{KV+9+2*q}], v[{X+2*q}:{X+1+2*q}]")
for p in range(4): e(f"v_cvt_pk_bf16_f32 v{PK+p}, v{KV+8+2*p}, v{KV+9+2*p}")
e(f"buffer_store_dwordx4 v[{PK}:{PK+3}], v2, s[16:19], s31 offen sc1", "s_branch L_kvflag")
a.lab("L_wr0")
e(f"ds_write_b128 v1, v[{KV+8}:{KV+11}]", f"ds_write_b128 v1, v[{KV+12}:{KV+15}] offset:1024", "ds_write_b32 v9, v10")
lds_wait(5, 8, 0)
for q in range(4): e(f"ds_read_b128 v[{X+4*q}:{X+3+4*q}], v3 offset:{q*1024}")
e("v_lshlrev_b32 v5, 1, v0", "s_waitcnt lgkmcnt(2)")
for q in range(4): e(f"v_pk_add_f32 v[{KV+2*q}:{KV+1+2*q}], v[{KV+2*q}:{KV+1+2*q}], v[{X+2*q}:{X+1+2*q}]")
for p in range(4): e(f"v_cvt_pk_bf16_f32 v{PK+p}, v{KV+2*p}, v{KV+1+2*p}")
e(f"buffer_store_dwordx4 v[{PK}:{PK+3}], v2, s[16:19], s31 offen sc1", "s_waitcnt lgkmcnt(0)")
for q in range(4): e(f"v_pk_add_f32 v[{Z+2*q}:{Z+1+2*q}], v[{Z+2*q}:{Z+1+2*q}], v[{X+8+2*q}:{X+9+2*q}]")
e("s_mov_b32 exec_lo, 0x00010001", "s_mov_b32 exec_hi, 0x00010001",
  f"buffer_store_dwordx4 v[{Z}:{Z+3}], v5, s[16:19], s30 offen sc1", f"buffer_store_dwordx4 v[{Z+4}:{Z+7}], v5, s[16:19], s30 offen offset:16 sc1", "s_mov_b64 exec, -1")
a.lab("L_kvflag")
stamp("kvex")
QI, QN, CQ, PQ = 156, 166, 148, 204
for r in range(5): e(f"ds_read_b32 v{QI+2*r}, v6 offset:{64*r}", f"ds_read_b32 v{QN+2*r}, v6 offset:{640+64*r}")
for c in range(2): e(f"ds_read_b128 v[{CQ+4*c}:{CQ+3+4*c}], v7 offset:{64*c}")
def qblock(r):
    inv = f"v[{QI+2*r}:{QI+1+2*r}]"; nb = f"v[{QN+2*r}:{QN+1+2*r}]"
    for c in range(2):
        d = ACC + (c*5+r)*4
        e(f"v_pk_mul_f32 v[12:13], v[{CQ+4*c}:{CQ+1+4*c}], {nb} {SH}", f"v_pk_mul_f32 v[14:15], v[{CQ+2+4*c}:{CQ+3+4*c}], {nb} {SH}",
          f"v_pk_fma_f32 v[{d}:{d+1}], v[{d}:{d+1}], {inv}, v[12:13] op_sel_hi:[1,0,1]", f"v_pk_fma_f32 v[{d+2}:{d+3}], v[{d+2}:{d+3}], {inv}, v[14:15] op_sel_hi:[1,0,1]")
        phi2(d, PQ+4*r+2*c, 12); phi2(d+2, PQ+4*r+2*c+1, 14)
QF = P("QF", 2)
e("s_waitcnt lgkmcnt(0)")
for r in range(QF): qblock(r)
arrive(32)
if QSW: e("s_xor_b32 s38, s38, 2", "s_xor_b32 s23, s23, 1")
stamp("kvpub")
for r in range(QF, 5): qblock(r)
e("v_mov_b32 v60, 0", "v_mov_b32 v61, 0", "v_mov_b32 v64, 0", "v_mov_b32 v65, 0", "v_mov_b32 v57, 0x3f80",
  "v_and_b32 v56, 1, v0", "v_lshlrev_b32 v56, 4, v56", "v_lshlrev_b32 v56, v56, v57",
  "v_bfe_u32 v57, v0, 2, 2", "v_lshrrev_b32 v58, 4, v0", "v_cmp_eq_u32 vcc, v57, v58", "v_bfe_u32 v57, v0, 1, 1", "s_nop 0", "v_cndmask_b32 v56, 0, v56, vcc",
  "v_cmp_eq_u32 vcc, 0, v57", "s_nop 1", "v_cndmask_b32 v62, 0, v56, vcc", "v_cndmask_b32 v63, v56, 0, vcc",
  "v_lshlrev_b32 v11, 5, v0", "v_cmp_gt_u32 vcc, 52, v0", f"v_mov_b32 v7, {hex(BIG)}", "v_lshrrev_b32 v6, 4, v0", "v_cndmask_b32 v11, v7, v11, vcc", "v_lshlrev_b32 v6, 2, v6",
  "s_lshl_b32 s30, s38, 15", "s_mul_i32 s31, s26, 14336", "s_add_u32 s30, s30, s31", f"s_add_u32 s30, s30, {hex(WS_KVP)}")
e("s_mul_i32 s31, s22, 37", "s_lshr_b32 s31, s31, 8", "s_mul_i32 s31, s31, 7", "s_sub_u32 s31, s22, s31")
for p in range(7):
    e(f"s_lshl_b32 s{60+p}, s31, 11", f"s_add_u32 s{60+p}, s{60+p}, s30", "s_mul_i32 s33, s26, 7", "s_add_u32 s33, s33, s31", "s_cmp_eq_u32 s33, 13",
      f"s_cselect_b32 s{60+p}, {hex(BIG)}, s{60+p}", "s_add_u32 s31, s31, 1", "s_cmp_eq_u32 s31, 7", "s_cselect_b32 s31, 0, s31")
e("s_lshl_b32 s33, s38, 11", f"s_add_u32 s33, s33, {hex(WS_ZP)}")
stamp("qdone")
e("s_cmp_lg_u32 s25, 0", "s_cbranch_scc1 L_kvw", "v_lshlrev_b32 v5, 7, v0", "s_lshl_b32 s30, s23, 8", f"s_add_u32 s30, s30, {hex(C_K)}")
if P("DLK", 0): e(f"s_sleep {P('DLK', 0)}")
poll(7, 5, 30, "3", 26, sleep=P("SLK", 1))
e("ds_write_b32 v4, v10 offset:32", "s_branch L_kvgo")
a.lab("L_kvw")
lds_wait(5, 4, 32, 1)
a.lab("L_kvgo")
stamp("kvpoll")
ZR, PL, SU = 16, 72, 40
e(f"buffer_load_dwordx4 v[{ZR}:{ZR+3}], v11, s[16:19], s33 offen sc1", f"buffer_load_dwordx4 v[{ZR+4}:{ZR+7}], v11, s[16:19], s33 offen offset:16 sc1")
for p in range(7):
    e(f"buffer_load_dwordx4 v[{PL+8*p}:{PL+3+8*p}], v2, s[16:19], s{60+p} offen sc1", f"buffer_load_dwordx4 v[{PL+4+8*p}:{PL+7+8*p}], v2, s[16:19], s{60+p} offen offset:1024 sc1")
e("s_lshl_b32 s30, s25, 12", f"s_add_u32 s30, s30, {L_EX2}", "v_add_u32 v3, s30, v2", "v_xor_b32 v7, 8192, v3",
  "s_mul_i32 s30, s37, 5", "s_lshl_b32 s30, s30, 5", "s_add_u32 s30, s30, s38", "s_lshl_b32 s30, s30, 10",
  "s_mov_b32 s44, s16", "s_mov_b32 s45, s17", "s_mov_b32 s46, 0x400000", "s_mov_b32 s47, 0x20000",
  "s_waitcnt vmcnt(14)")
for ctrl in ("row_ror:4", "row_ror:8"):
    for c in range(8): e(f"v_add_f32_dpp v{ZR+c}, v{ZR+c}, v{ZR+c} {ctrl} row_mask:0xf bank_mask:0xf")
for sw in ("v_permlane16_swap_b32", "v_permlane32_swap_b32"):
    for c in range(8): e(f"v_mov_b32 v{ZR+8+c}, v{ZR+c}")
    for c in range(8): e(f"{sw} v{ZR+c}, v{ZR+8+c}")
    for c in range(8): e(f"v_add_f32 v{ZR+c}, v{ZR+c}, v{ZR+8+c}")
for p in range(4): e(f"v_cvt_pk_bf16_f32 v{ZR+p}, v{ZR+2*p}, v{ZR+1+2*p}")
for p in range(4): e(f"ds_bpermute_b32 v{ZR+8+p}, v6, v{ZR+p}")
for p in range(7):
    e(f"s_waitcnt vmcnt({2*(6-p)})")
    for eb in range(2):
        for hf in range(2):
            d = SU + 8*eb + 4*hf
            e(f"v_mfma_f32_16x16x32_bf16 v[{d}:{d+3}], v[{62-2*hf}:{65-2*hf}], v[{PL+8*p+4*eb}:{PL+3+8*p+4*eb}], " + ("0" if p == 0 else f"v[{d}:{d+3}]"))
stamp("paysum")
e("s_waitcnt lgkmcnt(0)")
NU = 136
for r in range(5): e(f"v_mfma_f32_16x16x32_bf16 v[{NU+12*r+8}:{NU+12*r+11}], v[24:27], v[{PQ+4*r}:{PQ+4*r+3}], 0")
e("s_nop 2")
for q in range(4): e(f"ds_write_b128 v3, v[{SU+4*q}:{SU+3+4*q}] offset:{q*1024}")
e("ds_write_b32 v9, v10 offset:16")
for r in range(5): e(f"v_add_f32 v{NU+12*r+8}, s36, v{NU+12*r+8}")
for r in range(5): e(f"v_rcp_f32 v{NU+12*r+8}, v{NU+12*r+8}")
lds_wait(5, 8, 16)
for q in range(4): e(f"ds_read_b128 v[{PL+4*q}:{PL+3+4*q}], v7 offset:{q*1024}")
for q in range(8):
    if q % 2 == 0: e(f"s_waitcnt lgkmcnt({3 - q//2})")
    e(f"v_pk_add_f32 v[{SU+2*q}:{SU+1+2*q}], v[{SU+2*q}:{SU+1+2*q}], v[{PL+2*q}:{PL+1+2*q}]", f"v_cvt_pk_bf16_f32 v{16+q}, v{SU+2*q}, v{SU+1+2*q}")
e("s_nop 1")
for r in range(5):
    n = NU + 12*r
    e(f"v_mfma_f32_16x16x32_bf16 v[{n}:{n+3}], v[16:19], v[{PQ+4*r}:{PQ+4*r+3}], 0",
      f"v_mfma_f32_16x16x32_bf16 v[{n+4}:{n+7}], v[20:23], v[{PQ+4*r}:{PQ+4*r+3}], 0")
for r in range(5):
    n = NU + 12*r
    for q in range(4): e(f"v_pk_mul_f32 v[{n+2*q}:{n+2*q+1}], v[{n+2*q}:{n+2*q+1}], v[{n+8}:{n+9}] {SH}")
    for q in range(4): e(f"v_cvt_pk_bf16_f32 v{PL+4*r+q}, v{n+2*q}, v{n+2*q+1}")
    e(f"buffer_store_dwordx4 v[{PL+4*r}:{PL+3+4*r}], v2, s[44:47], s30 offen sc1", "s_add_u32 s30, s30, 32768")
stamp("ostore")
e("s_mul_i32 s30, s37, 5", "s_add_u32 s31, s30, 4", "s_min_u32 s31, s31, 127", "s_lshr_b32 s30, s30, 3", "s_lshr_b32 s31, s31, 3",
  "s_cmp_eq_u32 s30, s31", "s_cselect_b64 s[60:61], 1, 3", "s_lshl_b32 s30, s30, 9", "s_and_b32 s31, s23, 3", "s_lshl_b32 s31, s31, 7", "s_add_u32 s30, s30, s31",
  f"s_add_u32 s30, s30, {hex(C_O)}", "v_lshlrev_b32 v6, 9, v0")
arrive(30, 6, "s[60:61]")
stamp("opub")
e("s_branch L_phase2")

a.lab("L_loader")
e("s_cmp_eq_u32 s57, 1", "s_cbranch_scc1 L_moe_b")
e("s_sub_u32 s26, s25, 4")
e("s_mul_i32 s30, s22, 160", "s_mul_i32 s31, s26, 80", "s_add_u32 s30, s30, s31",
  "v_lshrrev_b32 v1, 3, v0", "v_add_u32 v3, s30, v1", "v_lshlrev_b32 v3, 11, v3",
  "v_and_b32 v4, 7, v0", "v_lshrrev_b32 v5, 4, v0", "v_xor_b32 v6, v4, v5", "v_lshlrev_b32 v6, 4, v6",
  "v_add_u32 v16, v3, v6", "v_xor_b32 v17, 64, v16", "v_add_u32 v17, 16384, v17")
for q in range(2, 10): e(f"v_add_u32 v{16+q}, {32768*(q>>1)}, v{16+(q&1)}")
e("s_lshl_b32 s30, s26, 5", "v_add_u32 v3, s30, v1", "v_mul_u32_u24 v3, 6144, v3",
  "v_and_b32 v6, 1, v5", "v_lshlrev_b32 v6, 2, v6", "v_xor_b32 v6, v4, v6", "v_lshlrev_b32 v6, 4, v6",
  "v_add_u32 v3, v3, v6", "s_lshl_b32 s30, s23, 7", "v_add_u32 v28, s30, v3", "v_xor_b32 v29, 32, v28", "v_add_u32 v29, 49152, v29")
for sec in (2, 1, 0):
    for p in (3, 2, 1, 0):
        if sec or p >= 2: e(f"v_add_u32 v{28+sec*4+p}, {sec*2048 + (p>>1)*98304}, v{28+(p&1)}")
if QSW:
    for p in range(4): e(f"v_xor_b32 v{28+p}, 128, v{28+p}")
e("s_mul_i32 s32, s26, 10240", "s_lshl_b32 s33, s26, 12", f"s_add_u32 s33, s33, {AB}", "s_mov_b32 s34, 0", "s_mov_b32 s35, 0", "s_mov_b32 s36, 0")
e("s_mov_b32 s31, 0")
a.lab("L_lloop")
e("s_cmp_lt_u32 s31, 2", "s_cbranch_scc1 L_lissue", "s_waitcnt vmcnt(22)", "s_barrier")
a.lab("L_lissue")
e("s_add_u32 s37, s36, s32", "s_add_u32 s38, s36, s33")
for q in range(10): e(f"s_add_u32 m0, s37, {q*1024}", "s_nop 0", f"buffer_load_dwordx4 v{16+q}, s[8:11], s34 offen lds")
for sec in range(3):
    for p in range(4): e(f"s_add_u32 m0, s38, {sec*8192 + p*1024}", "s_nop 0", f"buffer_load_dwordx4 v{28+sec*4+p}, s[12:15], s35 offen lds")
e("s_add_u32 s34, s34, 128", "s_add_u32 s35, s35, 393216", f"s_add_u32 s36, s36, {STAGE}", f"s_cmp_eq_u32 s36, {3*STAGE}", "s_cselect_b32 s36, 0, s36")
e("s_add_u32 s31, s31, 1", "s_cmp_lt_u32 s31, 16", "s_cbranch_scc1 L_lloop")
e("s_waitcnt vmcnt(22)", "s_barrier", "s_waitcnt vmcnt(0) lgkmcnt(0)", "s_add_u32 s52, s52, 1", "s_barrier", "s_barrier")
a.lab("L_wo")
stamp("wostart")
a.srd(40, 84, 0x200000)
e("s_sub_u32 s26, s25, 4", "v_lshrrev_b32 v1, 3, v0", "v_and_b32 v4, 7, v0", "v_lshrrev_b32 v5, 4, v0",
  "v_lshlrev_b32 v3, 11, v1", "v_lshlrev_b32 v6, 1, v5", "v_xor_b32 v6, v4, v6", "v_lshlrev_b32 v6, 4, v6", "v_add_u32 v3, v3, v6",
  "s_lshl_b32 s30, s29, 7", "v_add_u32 v40, s30, v3",
  "s_and_b32 s33, s29, 7", "s_lshl_b32 s33, s33, 1", "s_and_b32 s34, s28, 3", "s_lshl_b32 s34, s34, 2", "s_sub_u32 s34, s34, s33", "s_mov_b32 s31, 0")
a.lab("L_woloop")
e("s_and_b32 s35, s34, 15", "s_add_u32 s37, s35, s33", "s_and_b32 s37, s37, 15", "s_lshl_b32 s36, s26, 4",
  "s_add_u32 s35, s35, s36", "s_add_u32 s37, s37, s36", "s_lshl_b32 s35, s35, 12", "s_lshl_b32 s37, s37, 16")
for q in range(4): e(f"s_add_u32 m0, s35, {q*1024}", "s_nop 0", "buffer_load_dwordx4 v40, s[40:43], s37 offen lds", "s_add_u32 s37, s37, 16384")
e("s_waitcnt vmcnt(40)", "s_add_u32 s34, s34, 1", "s_add_u32 s31, s31, 1", "s_cmp_lt_u32 s31, 16", "s_cbranch_scc1 L_woloop")
e("s_waitcnt vmcnt(0)")
stamp("wodone")
e("s_branch L_phase2")

def act0():
    e("v_lshrrev_b32 v4, 4, v0", "v_lshlrev_b32 v4, 10, v4", "v_bfe_u32 v5, v0, 3, 1", "v_lshlrev_b32 v5, 8, v5", "v_add_u32 v4, v4, v5",
      "v_and_b32 v5, 7, v0", "v_lshlrev_b32 v5, 4, v5", "v_add_u32 v4, v4, v5", f"v_add_u32 v4, {L_CST}, v4", f"v_mov_b32 v6, {L_KEY}")
    for q in range(8): e(f"ds_read_b128 v[{8+4*q}:{11+4*q}], v4 offset:{(q>>1)*3072 + (q&1)*640}")
    e("ds_read_b128 v[40:43], v6", "ds_read_b128 v[44:47], v6 offset:16",
      "s_lshr_b32 s30, s2, 4", "s_mul_i32 s30, s30, 12288", "s_and_b32 s31, s2, 15", "s_mul_i32 s31, s31, 768", "s_add_u32 s30, s30, s31", f"s_add_u32 s30, s30, {hex(WS_CSP)}", "s_waitcnt lgkmcnt(0)")
    for q in range(1, 8):
        for c in range(4): e(f"v_add_f32 v{8+c}, v{8+c}, v{8+4*q+c}")
    e("v_max3_u32 v40, v40, v41, v42", "v_max3_u32 v40, v40, v43, v44", "v_max3_u32 v40, v40, v45, v46", "v_max_u32 v40, v40, v47", "v_mov_b32 v41, s52",
      "s_mov_b32 exec_hi, 0xffff", "buffer_store_dwordx4 v[8:11], v2, s[16:19], s30 offen sc1",
      "s_lshl_b32 s30, s2, 7", f"s_add_u32 s30, s30, {hex(WS_CN)}", "s_mov_b64 exec, 1", "buffer_store_dword v2, v2, s[16:19], s30 offen sc1", "s_mov_b64 exec, -1")
def e1flag():
    e("s_lshl_b32 s30, s2, 3", f"s_add_u32 s30, s30, {hex(WS_E1T)}", "s_mov_b64 exec, 1", "s_waitcnt vmcnt(0)",
      "buffer_store_dwordx2 v[40:41], v2, s[16:19], s30 offen sc1", "s_mov_b64 exec, -1")
def e1_issue():
    e("v_lshlrev_b32 v19, 5, v0", f"s_mov_b32 s54, {hex(WS_E1T)}",
      "buffer_load_dwordx4 v[40:43], v19, s[16:19], s54 offen sc1", "buffer_load_dwordx4 v[44:47], v19, s[16:19], s54 offen offset:16 sc1")
def e1_check(sleep=1):
    lp, ld = a.newlab(), a.newlab()
    e(f"s_mov_b32 s39, {SPIN}")
    a.lab(lp)
    e("s_waitcnt vmcnt(0)", "v_xor_b32 v4, s52, v41", "v_xor_b32 v5, s52, v43", "v_xor_b32 v6, s52, v45", "v_xor_b32 v7, s52, v47",
      "v_or_b32 v4, v4, v5", "v_or3_b32 v4, v4, v6, v7", "v_cmp_ne_u32 vcc, 0, v4", f"s_cbranch_vccz {ld}", f"s_sleep {sleep}",
      "buffer_load_dwordx4 v[40:43], v19, s[16:19], s54 offen sc1", "buffer_load_dwordx4 v[44:47], v19, s[16:19], s54 offen offset:16 sc1",
      "s_sub_u32 s39, s39, 1", f"s_cbranch_scc0 {lp}")
    a.lab(ld)
    e("s_waitcnt vmcnt(0)")
def e1_idx():
    e("v_max_u32 v40, v40, v42", "v_max3_u32 v40, v40, v44, v46")
    a.wave_allreduce([40], [41], op="v_max_u32")
    e("s_nop 0", "v_readfirstlane_b32 s55, v40", "s_nop 3", "s_and_b32 s55, s55, 0x7ff", "s_sub_u32 s55, 2047, s55")
def st2_loads():
    e("s_lshl_b32 s31, s28, 11", f"s_add_u32 s31, s31, {hex(WS_ST)}",
      "buffer_load_dwordx4 v[48:51], v2, s[16:19], s31 offen sc1", "buffer_load_dwordx4 v[52:55], v2, s[16:19], s31 offen offset:1024 sc1",
      "s_lshl_b32 s30, s55, 4", f"s_add_u32 s30, s30, {hex(WS_ST)}", "v_mov_b32 v4, 0", "buffer_load_dwordx4 v[56:59], v4, s[16:19], s30 offen sc1")
def st2_use():
    e("v_lshlrev_b32 v4, 3, v0", f"v_add_u32 v4, {L_ST2}, v4", "ds_write_b64 v4, v[48:49]", "ds_write_b64 v4, v[52:53] offset:512")
    bf16r(58); sigmoid(58); bf16r(58)
    e("v_mov_b32 v59, s55", f"v_mov_b32 v4, {L_MISC}", "ds_write_b64 v4, v[58:59]")
def zero_flags():
    e(f"v_mov_b32 v4, {L_FLG}", "v_mov_b32 v8, 0", "v_mov_b32 v9, 0", "v_mov_b32 v10, 0", "v_mov_b32 v11, 0",
      "ds_write_b128 v4, v[8:11]", "ds_write_b128 v4, v[8:11] offset:16", "ds_write_b128 v4, v[8:11] offset:32")
a.lab("L_service")
e("s_sub_u32 s26, s25, 6")
if P("CPF", 1):
    e("s_getpc_b64 s[30:31]")
    a.lab("L_pc")
    e(f"s_sub_u32 s30, s30, L_pc-{K}", "s_subb_u32 s31, s31, 0", "s_lshl_b32 s32, s21, 1", "s_add_u32 s32, s32, s26", "s_lshl_b32 s32, s32, 9",
      "v_lshlrev_b32 v3, 7, v0", "v_add_u32 v3, s32, v3", f"v_min_u32 v3, L_end-{K}, v3", "s_mov_b64 exec, 15", "global_load_dword v245, v3, s[30:31]", "s_mov_b64 exec, -1")
TLBW = P("TLBW", 0)
if TLBW:
    l = a.newlab()
    e("s_cmp_lg_u32 s26, 1", f"s_cbranch_scc1 {l}", f"s_lshl_b32 s30, s21, {TLBW}", "v_mov_b32 v3, s30", "s_mov_b64 exec, 1")
    for pr, sz in ((74, 7340032), (76, 7340032), (78, 7340032), (84, 0x200000), (80, 0x400000), (82, 0x600000)):
        e(f"v_min_u32 v4, {sz-4}, v3", f"global_load_dword v243, v4, s[{pr}:{pr+1}]")
    e("s_mov_b64 exec, -1")
    a.lab(l)
e("s_cmp_eq_u32 s57, 1", "s_cbranch_scc1 L_moe_b")
a.srd(40, 84, 0x200000)
zero_flags()
e("s_waitcnt lgkmcnt(0)", "s_add_u32 s52, s52, 1")
def only(w, f):
    l = a.newlab()
    e(f"s_cmp_lg_u32 s26, {w}", f"s_cbranch_scc1 {l}"); f(); a.lab(l)
def both(f6, f7):
    l7, lj = a.newlab(), a.newlab()
    e("s_cmp_lg_u32 s26, 0", f"s_cbranch_scc1 {l7}"); f6(); e(f"s_branch {lj}"); a.lab(l7); f7(); a.lab(lj)
def rg(n): return 64 + 4*n
regs7 = [rg(4*sec)+c for sec in range(3) for c in range(4)]
def c6():
    e1_idx(); st2_loads()
    l = a.newlab()
    e("s_mul_i32 s30, s22, 2560", f"s_add_u32 s30, s30, {hex(WS_ST)}",
      "buffer_load_dwordx2 v[20:21], v2, s[16:19], s30 offen sc1", "buffer_load_dwordx2 v[22:23], v2, s[16:19], s30 offen offset:1024 sc1",
      "buffer_load_dwordx2 v[24:25], v2, s[16:19], s30 offen offset:2048 sc1",
      "s_cmp_lg_u32 s2, 0", f"s_cbranch_scc1 {l}", f"s_mov_b32 s30, {hex(WS_EP)}", "v_mov_b32 v6, s52", "s_mov_b64 exec, 1",
      "buffer_store_dword v6, v4, s[16:19], s30 offen sc1", "s_mov_b64 exec, -1")
    a.lab(l)
def c7():
    e("v_lshrrev_b32 v4, 4, v0", "v_mul_u32_u24 v4, 12288, v4", "v_and_b32 v5, 15, v0", "v_lshlrev_b32 v5, 4, v5", "v_add_u32 v4, v4, v5",
      "s_lshl_b32 s30, s23, 8", f"s_add_u32 s30, s30, {hex(WS_CSP)}")
    for n in range(12):
        e(f"s_add_u32 s31, s30, {(n>>2)*4096 + (n&3)*49152}")
        if QSW and n < 4: e("s_xor_b32 s31, s31, 256")
        e(f"buffer_load_dwordx4 v[{rg(n)}:{rg(n)+3}], v4, s[16:19], s31 offen sc1")
def u6a():
    e("v_mul_f32 v20, v20, v21", "v_mul_f32 v22, v22, v23", "v_mul_f32 v24, v24, v25", "v_lshlrev_b32 v4, 2, v0", f"v_add_u32 v4, {L_INV}, v4",
      "ds_write_b32 v4, v21", "ds_write_b32 v4, v23 offset:256", "ds_write_b32 v4, v20 offset:640", "ds_write_b32 v4, v22 offset:896",
      "s_mov_b32 exec_hi, 0", "ds_write_b32 v4, v25 offset:512", "ds_write_b32 v4, v24 offset:1152", "s_mov_b64 exec, -1")
def u7a():
    for sec in range(3):
        for n in range(1, 4):
            for c in range(4): e(f"v_add_f32 v{rg(4*sec)+c}, v{rg(4*sec)+c}, v{rg(4*sec+n)+c}")
def u7s(sw):
    for k, r in enumerate(regs7): e(f"v_mov_b32 v{20+k}, v{r}")
    for k, r in enumerate(regs7): e(f"{sw} v{r}, v{20+k}")
    for k, r in enumerate(regs7): e(f"v_add_f32 v{r}, v{r}, v{20+k}")
def u7c():
    u7s("v_permlane32_swap_b32")
    e("v_bfe_u32 v4, v0, 3, 1", "v_lshlrev_b32 v4, 7, v4", "v_and_b32 v5, 7, v0", "v_lshlrev_b32 v5, 2, v5", "v_add_u32 v4, v4, v5", f"v_add_u32 v4, {L_CS}, v4")
    for sec in range(3):
        for c in range(4): e(f"ds_write_b32 v4, v{rg(4*sec)+c} offset:{256*sec + 32*c}")
def wo_pf():
    e("s_lshl_b32 s30, s21, 7", "s_lshl_b32 s31, s26, 6", "s_add_u32 s30, s30, s31", "v_add_u32 v4, s30, v0",
      "v_and_b32 v5, 7, v4", "v_lshlrev_b32 v5, 7, v5", "v_lshrrev_b32 v4, 3, v4", "v_lshlrev_b32 v4, 11, v4", "v_add_u32 v4, v4, v5",
      "s_lshl_b32 s30, s24, 10")
    for q in range(3): e("buffer_load_dword v244, v4, s[40:43], s30 offen", "s_add_u32 s30, s30, 0xC0000")
def hot_pf(s0, per):
    e(f"s_mul_i32 s30, s21, {per}", f"s_add_u32 s30, s30, {192*s0}", "v_add_u32 v4, s30, v0", "v_lshlrev_b32 v4, 11, v4",
      f"v_cmp_gt_u32 vcc, {per}, v0", f"v_mov_b32 v5, {hex(BIG)}", "s_lshr_b32 s31, s20, 1", "s_lshl_b32 s31, s31, 9", "s_add_u32 s31, s31, 384", "v_cndmask_b32 v4, v5, v4, vcc",
      "s_bitcmp1_b32 s20, 1", "s_cselect_b32 s31, 0x600000, s31", "buffer_load_dword v244, v4, s[12:15], s31 offen")
fixed = {0: [lambda: only(0, act0)], 1: [lambda: only(0, e1flag)], SE: [e1_issue], SE+1: [e1_check, lambda: both(c6, c7)],
         SE+3: [lambda: e("s_waitcnt vmcnt(0)"), lambda: both(u6a, u7a)], SE+4: [lambda: both(st2_use, lambda: u7s("v_permlane16_swap_b32"))],
         SE+5: [lambda: only(1, u7c), lambda: e("s_waitcnt lgkmcnt(0)")], P("TWO", 14): [wo_pf]}
def pfA(s0):
    e("s_mul_i32 s30, s24, 960", "s_mul_i32 s31, s21, 44", "s_add_u32 s30, s30, s31", "v_lshrrev_b32 v4, 2, v0", "v_add_u32 v4, s30, v4", "v_lshlrev_b32 v4, 11, v4",
      "v_and_b32 v5, 3, v0", "v_lshlrev_b32 v5, 7, v5", "v_add_u32 v4, v4, v5", f"s_mov_b32 s30, {128*s0}",
      "buffer_load_dword v244, v4, s[8:11], s30 offen", "s_add_u32 s30, s30, 32768", "buffer_load_dword v244, v4, s[8:11], s30 offen", "s_add_u32 s30, s30, 32768",
      "s_mov_b32 exec_hi, 0xffff", "buffer_load_dword v244, v4, s[8:11], s30 offen", "s_mov_b64 exec, -1")
def pfB(s0):
    e("s_mul_i32 s30, s21, 30", f"s_add_u32 s30, s30, {192*s0}", "v_lshrrev_b32 v4, 2, v0", "v_add_u32 v4, s30, v4", "v_lshlrev_b32 v4, 11, v4",
      "v_and_b32 v5, 3, v0", "v_lshlrev_b32 v5, 7, v5", "v_add_u32 v4, v4, v5", "s_lshr_b32 s30, s20, 1", "s_lshl_b32 s30, s30, 9",
      "buffer_load_dword v244, v4, s[12:15], s30 offen", "s_add_u32 s30, s30, 32768",
      "s_mov_b32 exec_hi, 0xffffff", "buffer_load_dword v244, v4, s[12:15], s30 offen", "s_mov_b64 exec, -1")
PFM = P("PFM", 3)
for it in [x for x in os.environ.get("PF", "").split(",") if x]:
    t, s0 = [int(v) for v in it.split(":")]
    fixed.setdefault(t, []).append(lambda s0=s0: both((lambda: pfA(s0)) if PFM & 1 else (lambda: None), (lambda: pfB(s0)) if PFM & 2 else (lambda: None)))
HP = os.environ.get("HP", "0:2:24,2:5:24,5:8:24,8:11:24,11:14:24")
for it in [x for x in HP.split(",") if x]:
    t, s0, per = [int(v) for v in it.split(":")]
    fixed.setdefault(t, []).append(lambda s0=s0, per=per: only(1, lambda: hot_pf(s0, per)))
SST = P("SST", 0)
for t in range(17):
    e("s_barrier")
    if SST and t >= 2:
        r = 88 + 2*(t-2) if t < 9 else 56 + 2*(t-9)
        e(f"s_memtime s[{r}:{r+1}]")
    for f in fixed.get(t, []): f()
if SST:
    e("s_cmp_lg_u32 s25, 6", "s_cbranch_scc1 L_nosst", "s_waitcnt lgkmcnt(0)", "s_mul_i32 s30, s2, 128", "s_add_u32 s30, s30, 0x0F100000")
    e("v_mov_b32 v4, 0")
    for g in range(8):
        src = [86+4*g+q if g < 4 else 56+4*(g-4)+q for q in range(4)]
        for q in range(4): e(f"v_mov_b32 v{8+q}, s{src[q]}")
        e("s_mov_b64 exec, 1", f"buffer_store_dwordx4 v[8:11], v4, s[16:19], s30 offen offset:{16*g}", "s_mov_b64 exec, -1", "s_waitcnt vmcnt(0)")
    a.lab("L_nosst")
e("s_waitcnt vmcnt(0)", "s_branch L_phase2")

a.lab("L_moe_a")
e("s_setprio 0", "s_waitcnt vmcnt(0)")
a.lab("L_moe_b")
e("s_waitcnt lgkmcnt(0)", "s_add_u32 s52, s52, 1", "s_barrier",
  "s_and_b32 s48, s58, 1", "s_lshr_b32 s49, s58, 4", "s_lshr_b32 s50, s58, 1",
  "s_mul_i32 s51, s50, 56", "s_mul_i32 s51, s51, 21846", "s_lshr_b32 s51, s51, 16",
  "s_cmp_eq_u32 s48, 0", "s_cselect_b32 s40, s74, s76", "s_cselect_b32 s41, s75, s77", "s_and_b32 s41, s41, 0xffff", "s_mov_b32 s42, 7340032", "s_mov_b32 s43, 0x20000")
a.srd(44, 78, 7340032)
if P("NOMOE", 0): e("s_mov_b32 s42, 0", "s_mov_b32 s46, 0")
e("v_lshrrev_b32 v1, 3, v0", "v_and_b32 v3, 7, v0", "v_lshlrev_b32 v3, 4, v3", "s_cmp_eq_u32 s25, 7", "s_cbranch_scc1 L_moe7")
MW, MX = 64, 20
e("v_mul_u32_u24 v16, 7168, v1", "v_add_u32 v16, v16, v3",
  "s_and_b32 s27, s50, 7", "s_mul_i32 s27, s27, 7", "s_add_u32 s27, s27, s25",
  "s_mul_i32 s53, s49, 2465792", "s_lshl_b32 s30, s27, 7", "s_add_u32 s53, s53, s30")
if P("M0B", 1): e("s_barrier")
for n in range(43): e(f"buffer_load_dwordx4 v[{MW+4*n}:{MW+4*n+3}], v16, s[40:43], s53 offen {WNT}", "s_add_u32 s53, s53, 57344")
e("v_mov_b32 v9, 0xffff"); onehot(240, 8, 9)
e("v_mul_u32_u24 v17, 176, v1", f"v_add_u32 v17, {L_XS}, v17", "s_barrier")
for q in range(11): e(f"ds_read_b128 v[{MX+4*q}:{MX+4*q+3}], v17 offset:{16*q}")
e("s_waitcnt lgkmcnt(0)")
def mgemv(cnt):
    for n in range(cnt):
        b = 12 + 4*(n & 1)
        for q in range(4): e(f"v_and_b32 v{b+q}, v{MX+n}, v{240+q}")
        e(f"s_waitcnt vmcnt({cnt-1-n})", "s_nop 0", f"v_mfma_f32_16x16x32_bf16 v[8:11], v[{MW+4*n}:{MW+4*n+3}], v[{b}:{b+3}], " + ("0" if n == 0 else "v[8:11]"))
    e("v_lshrrev_b32 v16, 4, v0", "v_lshlrev_b32 v16, 7, v16", "v_add_u32 v16, v16, v3", "s_nop 5")
    for c in range(4): e(f"v_mov_b32 v{12+c}, v{8+c}")
    for c in range(4): e(f"v_permlane32_swap_b32 v{8+c}, v{12+c}")
    for c in range(4): e(f"v_add_f32_dpp v{8+c}, v{12+c}, v{8+c} row_ror:8 row_mask:0xf bank_mask:0xf")
mgemv(43)
stamp("gumath")
e("s_mul_i32 s30, s49, 28672", "s_mul_i32 s31, s48, 14336", "s_add_u32 s30, s30, s31", "s_lshl_b32 s31, s27, 8", "s_add_u32 s30, s30, s31", f"s_add_u32 s30, s30, {hex(WS_GU)}",
  "s_mov_b32 exec_lo, 0x00ff00ff", "s_mov_b32 exec_hi, 0", "buffer_store_dwordx4 v[8:11], v16, s[16:19], s30 offen sc1", "s_mov_b64 exec, -1",
  "s_lshl_b32 s30, s27, 7", f"s_add_u32 s30, s30, {hex(C_G)}")
arrive(30)
stamp("gupub")
e("s_branch L_moe_d")
a.lab("L_moe7")
e("s_setprio 3"); act0(); e1flag()
if P("M0B", 1): e("s_barrier")
if P("E1D", 80): e(f"s_sleep {P('E1D', 80)}")
e1_issue(); e1_check(P("E1S", 32)); e1_idx(); st2_loads()
e("s_lshl_b32 s30, s55, 11", "s_mul_i32 s31, s49, 688", "s_add_u32 s30, s30, s31", "buffer_load_dwordx4 v[20:23], v2, s[8:11], s30 offen", "s_waitcnt vmcnt(0)")
for q in range(4): e(f"v_lshlrev_b32 v{24+2*q}, 16, v{20+q}", f"v_and_b32 v{25+2*q}, 0xffff0000, v{20+q}")
for q in range(8): e(f"v_add_f32 v{24+q}, v{24+q}, v56")
for q in range(8): bf16r(24+q)
for q in range(8): e(f"v_mul_f32 v{24+q}, v{24+q}, v57")
for q in range(8): e(f"v_cvt_pk_bf16_f32 v{24+q}, v{24+q}, v{24+q}")
e("v_lshlrev_b32 v4, 2, v0", f"v_add_u32 v4, {L_XS}, v4", "s_mov_b32 exec_hi, 0xfff")
for q in range(8): e(f"ds_write_b32 v4, v{24+q} offset:{176*q}")
e("s_mov_b64 exec, -1")
st2_use()
e("v_mov_b32 v9, 0xffff"); onehot(240, 8, 9)
e("s_waitcnt lgkmcnt(0)", "s_barrier")
a.lab("L_moe_d")
e("v_lshlrev_b32 v17, 11, v1", "v_add_u32 v17, v17, v3", "s_lshl_b32 s27, s48, 3", "s_add_u32 s27, s27, s25",
  "s_lshl_b32 s30, s51, 14", "s_lshl_b32 s31, s27, 7", "s_add_u32 s30, s30, s31", "s_cmp_lt_u32 s25, 3", "s_cbranch_scc1 L_moe_h")
for n in range(19): e(f"buffer_load_dwordx4 v[{MW+4*n}:{MW+4*n+3}], v17, s[44:47], s30 offen {WNT}", "s_add_u32 s30, s30, 16384")
e("s_branch L_moe_e")
a.lab("L_moe_h")
e("s_lshr_b32 s33, s51, 3", "s_add_u32 s34, s51, 18", "s_lshr_b32 s34, s34, 3", "s_sub_u32 s34, s34, s33",
  "v_cmp_ge_u32 s[36:37], s34, v0", "v_and_b32 v12, 7, v0",
  "v_lshlrev_b32 v13, 7, v0", "s_lshl_b32 s33, s33, 7", f"s_add_u32 s33, s33, {hex(C_G)}")
poll(14, 13, 33, "s[36:37]", 6, sleep=P("SLG", 8))
stamp("gupoll")
e("s_lshl_b32 s33, s25, 3", "v_add_u32 v13, s33, v1", "v_add_u32 v14, s51, v13", "v_min_u32 v14, 447, v14",
  "v_lshrrev_b32 v15, 2, v14", "v_lshlrev_b32 v15, 7, v15", "v_and_b32 v14, 3, v14", "v_lshlrev_b32 v14, 2, v14", "v_add3_u32 v14, v14, v15, v3",
  f"s_mov_b32 s33, {hex(WS_GU)}")
for s in range(6): e(f"buffer_load_dword v{20+s}, v14, s[16:19], s33 offen sc1", "s_add_u32 s33, s33, 14336")
for n in range(19): e(f"buffer_load_dwordx4 v[{MW+4*n}:{MW+4*n+3}], v17, s[44:47], s30 offen {WNT}", "s_add_u32 s30, s30, 16384")
e("s_mul_i32 s33, s50, 21846", "s_lshr_b32 s33, s33, 16", "s_mul_i32 s33, s33, 3", "s_cmp_eq_u32 s33, s50", "s_cselect_b32 s33, 18, 19",
  "s_waitcnt vmcnt(19)", "v_add_f32 v20, v20, v22", "v_add_f32 v21, v21, v23", "v_add_f32 v20, v20, v24", "v_add_f32 v21, v21, v25")
bf16r(20); bf16r(21)
e("v_mov_b32 v22, v20"); sigmoid(22); e("v_mul_f32 v20, v20, v22"); bf16r(20)
e("v_mul_f32 v20, v20, v21", "v_cmp_gt_u32 vcc, s33, v13", "v_cvt_pk_bf16_f32 v20, v20, v20", "v_mul_u32_u24 v14, 96, v12", "v_cndmask_b32 v20, 0, v20, vcc",
  "v_lshlrev_b32 v13, 2, v13", "v_add_u32 v14, v14, v13", f"v_add_u32 v14, {L_HS}, v14", "ds_write_b32 v14, v20")
a.lab("L_moe_e")
e("v_mul_u32_u24 v17, 96, v1", f"v_add_u32 v17, {L_HS}, v17", "s_waitcnt lgkmcnt(0)", "s_barrier")
for q in range(5): e(f"ds_read_b128 v[{MX+4*q}:{MX+4*q+3}], v17 offset:{16*q}")
e("s_waitcnt lgkmcnt(0)")
mgemv(19)
e("s_lshl_b32 s30, s50, 12", "s_lshl_b32 s31, s27, 8", "s_add_u32 s30, s30, s31", f"s_add_u32 s30, s30, {hex(WS_YP)}",
  "s_mov_b32 exec_lo, 0x00ff00ff", "s_mov_b32 exec_hi, 0", "buffer_store_dwordx4 v[8:11], v16, s[16:19], s30 offen sc1", "s_mov_b64 exec, -1",
  "s_lshl_b32 s30, s27, 7", f"s_add_u32 s30, s30, {hex(C_Y)}")
arrive(30)
stamp("ypub")
e("s_and_b32 s30, s25, 6", "s_cmp_eq_u32 s30, 4", "s_cbranch_scc1 L_wo")

a.lab("L_phase2")
stamp("p2in")
a.srd(40, 80, 0x400000)
e("s_and_b32 s26, s25, 3", "s_lshr_b32 s27, s25, 2",
  "s_lshl_b32 s30, s28, 3", "s_lshl_b32 s31, s26, 1", "s_add_u32 s30, s30, s31", "s_lshl_b32 s33, s30, 15",
  "s_lshl_b32 s31, s27, 14", "s_add_u32 s33, s33, s31",
  "s_and_b32 s34, s29, 7", "s_lshl_b32 s34, s34, 1",
  "s_add_u32 s30, s30, s27", "s_lshl_b32 s30, s30, 4", "v_and_b32 v247, 15, v0", "v_add_u32 v246, s30, v247", "v_lshlrev_b32 v246, 11, v246",
  "v_bfe_u32 v1, v0, 4, 1", "v_lshlrev_b32 v1, 5, v1", "v_lshrrev_b32 v3, 5, v0", "v_lshlrev_b32 v3, 4, v3", "v_add_u32 v1, v1, v3",
  "s_lshl_b32 s31, s29, 7", "v_add3_u32 v246, v246, v1, s31",
  "buffer_load_dwordx4 v[248:251], v246, s[8:11], 0 offen", "buffer_load_dwordx4 v[252:255], v246, s[8:11], 0 offen offset:64",
  "s_and_b32 s30, s30, 127", "v_add_u32 v247, s30, v247",
  "v_lshlrev_b32 v4, 3, v247", f"v_add_u32 v4, {L_ST2}, v4", f"v_mov_b32 v5, {L_MISC}", "ds_read_b64 v[240:241], v4", "ds_read_b64 v[242:243], v5",
  "v_lshlrev_b32 v245, 1, v1",
  "s_lshl_b32 s31, s27, 15", "v_add_u32 v12, s31, v2", "v_xor_b32 v3, 32768, v12",
  "v_and_b32 v4, 60, v0", "v_lshlrev_b32 v4, 5, v4", "v_bfe_u32 v5, v0, 3, 2", "v_lshlrev_b32 v5, 5, v5", "v_add_u32 v4, v4, v5",
  "v_and_b32 v5, 3, v0", "v_lshlrev_b32 v5, 3, v5", "v_add_u32 v4, v4, v5", "s_lshl_b32 s31, s27, 16", "v_add_u32 v4, s31, v4",
  "v_xor_b32 v5, 32, v4", "v_xor_b32 v6, 64, v4", "v_xor_b32 v7, 96, v4")
for n in range(16): e(f"s_add_u32 s{56+n}, s34, {n}", f"s_and_b32 s{56+n}, s{56+n}, 15", f"s_lshl_b32 s{56+n}, s{56+n}, 10", f"s_add_u32 s{56+n}, s{56+n}, s33")
e("s_waitcnt lgkmcnt(0)", "v_readfirstlane_b32 s55, v243", "v_mov_b32 v244, v241", "s_cmp_lg_u32 s25, 0", "s_cbranch_scc1 L_y1")
e("v_lshlrev_b32 v8, 7, v0", "s_mul_i32 s30, s28, 1640", "s_lshr_b32 s31, s30, 10", "s_add_u32 s30, s30, 1435", "s_lshr_b32 s30, s30, 10",
  "s_sub_u32 s30, s30, s31", "s_add_u32 s30, s30, 1", "s_lshl_b32 s30, s30, 3", "s_lshl_b32 s31, s28, 9", f"s_add_u32 s31, s31, {hex(C_O)}")
if P("DLO", 0): e(f"s_sleep {P('DLO', 0)}")
poll(9, 8, 31, "15", "s30", sleep=P("SLO", 1))
a.lab("L_y1")
e(f"s_setprio {P('PR2A', 0)}", "s_cmp_lt_u32 s25, 4", "s_cbranch_scc1 L_y1b", f"s_setprio {P('PR2B', 1)}")
a.lab("L_y1b")
e("s_barrier")
stamp("y1")
PD = P("PD", 4)
def oload(n):
    return [f"buffer_load_dwordx4 v[{64+8*n}:{67+8*n}], v12, s[16:19], s{56+n} offen sc1", f"buffer_load_dwordx4 v[{68+8*n}:{71+8*n}], v3, s[16:19], s{56+n} offen sc1"]
for n in range(PD): e(*oload(n))
F2 = [192, 208, 224]
def reads2(n):
    R = []
    for cb in range(4):
        f = F2[n % 3] + 4*cb
        R += [f"ds_read_b64_tr_b16 v[{f}:{f+1}], v{4+cb} offset:{n*4096}", f"ds_read_b64_tr_b16 v[{f+2}:{f+3}], v{4+cb} offset:{n*4096+2048}"]
    return R
e(*reads2(0)); e(*reads2(1))
for n in range(16):
    if n + PD < 16: e(*oload(n + PD))
    R = reads2(n+2) if n < 14 else []
    e(f"s_waitcnt vmcnt({2*min(PD, 15-n)}) lgkmcnt({8 if n < 15 else 0})")
    q = 0
    for cb in range(4):
        for rb in range(2):
            d = 16 + (rb*4+cb)*4; f = F2[n % 3] + 4*cb
            e(f"v_mfma_f32_16x16x32_bf16 v[{d}:{d+3}], v[{f}:{f+3}], v[{64+8*n+4*rb}:{67+8*n+4*rb}], " + ("0" if n == 0 else f"v[{d}:{d+3}]"))
            if q < len(R): e(R[q])
            q += 1
stamp("g2end")
e("s_lshl_b32 s30, s25, 12", f"s_add_u32 s30, s30, {S}", "v_add_u32 v4, s30, v2", "v_xor_b32 v5, 16384, v4",
  "s_lshr_b32 s30, s55, 7", "s_cmp_eq_u32 s30, s28", "s_cselect_b32 s56, 1, 0", "s_nop 1")
for cb in range(4): e(f"ds_write_b128 v4, v[{32+4*cb}:{35+4*cb}] offset:{cb*1024}")
e("s_cmp_eq_u32 s56, 1", "s_cbranch_scc1 L_sel")
def final(sel):
    if sel:
        l = a.newlab()
        e("s_cmp_lg_u32 s25, 6", f"s_cbranch_scc1 {l}", "s_lshl_b32 s30, s29, 7", f"s_add_u32 s30, s30, {hex(C_Y)}")
        poll(9, 2, 30, "1", 24)
        e("v_lshrrev_b32 v8, 4, v0", "v_lshlrev_b32 v8, 12, v8", "v_and_b32 v9, 15, v0", "v_lshlrev_b32 v9, 4, v9", "v_add_u32 v8, v8, v9",
          "s_lshl_b32 s30, s29, 8", f"s_add_u32 s30, s30, {hex(WS_YP)}")
        for n in range(6): e(f"buffer_load_dwordx4 v[{64+4*n}:{67+4*n}], v8, s[16:19], s30 offen sc1", "s_add_u32 s30, s30, 16384")
        e("v_bfe_u32 v9, v0, 3, 1", "v_lshlrev_b32 v9, 7, v9", "v_and_b32 v10, 7, v0", "v_lshlrev_b32 v10, 2, v10", "v_add_u32 v9, v9, v10", "s_waitcnt vmcnt(0)")
        for n in range(1, 6): e(f"v_pk_add_f32 v[64:65], v[64:65], v[{64+4*n}:{65+4*n}]", f"v_pk_add_f32 v[66:67], v[66:67], v[{66+4*n}:{67+4*n}]")
        for sw in ("v_permlane16_swap_b32", "v_permlane32_swap_b32"):
            for c in range(4): e(f"v_mov_b32 v{68+c}, v{64+c}")
            for c in range(4): e(f"{sw} v{64+c}, v{68+c}")
            for c in range(4): e(f"v_add_f32 v{64+c}, v{64+c}, v{68+c}")
        for c in range(4):
            bf16r(64+c); e(f"v_mul_f32 v{64+c}, v{64+c}, v242"); bf16r(64+c)
        a.lab(l)
    e("s_waitcnt lgkmcnt(0)", "s_barrier")
    stamp("y2")
    for cb in range(4): e(f"ds_read_b128 v[{32+4*cb}:{35+4*cb}], v5 offset:{cb*1024}")
    if sel:
        l = a.newlab()
        e("s_cmp_lg_u32 s25, 6", f"s_cbranch_scc1 {l}")
        for c in range(4): e(f"ds_write_b32 v9, v{64+c} offset:{32*c}")
        a.lab(l)
        e("s_waitcnt lgkmcnt(0)", "s_barrier")
        for pr in range(2): e(f"ds_read_b128 v[{96+8*pr}:{99+8*pr}], v245 offset:{128*pr}", f"ds_read_b128 v[{100+8*pr}:{103+8*pr}], v245 offset:{128*pr+16}")
        e("s_and_b32 s55, s55, 127", "v_cmp_eq_u32 vcc, s55, v247", "v_mov_b32 v14, 0", "v_mov_b32 v3, 1.0", "s_waitcnt lgkmcnt(0)", "v_cndmask_b32 v14, v14, v3, vcc")
    for cb in range(4):
        if not sel: e(f"s_waitcnt lgkmcnt({3-cb})")
        e(f"v_pk_add_f32 v[{16+4*cb}:{17+4*cb}], v[{16+4*cb}:{17+4*cb}], v[{32+4*cb}:{33+4*cb}]", f"v_pk_add_f32 v[{18+4*cb}:{19+4*cb}], v[{18+4*cb}:{19+4*cb}], v[{34+4*cb}:{35+4*cb}]",
          f"v_cvt_pk_bf16_f32 v{48+2*cb}, v{16+4*cb}, v{17+4*cb}", f"v_cvt_pk_bf16_f32 v{49+2*cb}, v{18+4*cb}, v{19+4*cb}")
    e("s_nop 1")
    for pr in range(2): e(f"v_permlane16_swap_b32 v{48+4*pr}, v{50+4*pr}", f"v_permlane16_swap_b32 v{49+4*pr}, v{51+4*pr}")
    e("s_waitcnt vmcnt(0)")
    for pr in range(2):
        for c in range(4):
            x = 248 + 4*pr + c; at = 48 + 4*pr + c
            e(f"v_lshlrev_b32 v8, 16, v{x}", f"v_and_b32 v9, 0xffff0000, v{x}",
              f"v_lshlrev_b32 v12, 16, v{at}", f"v_and_b32 v13, 0xffff0000, v{at}",
              f"v_pk_add_f32 v[10:11], v[8:9], v[240:241] {SH}",
              "v_pk_add_f32 v[8:9], v[8:9], v[12:13]",
              "v_cvt_pk_bf16_f32 v10, v10, v11", "v_cvt_pk_bf16_f32 v8, v8, v9",
              "v_and_b32 v11, 0xffff0000, v10", "v_lshlrev_b32 v10, 16, v10",
              "v_and_b32 v9, 0xffff0000, v8", "v_lshlrev_b32 v8, 16, v8",
              f"v_pk_mul_f32 v[10:11], v[10:11], v[244:245] {SH}",
              "v_cvt_pk_bf16_f32 v10, v10, v11", "v_and_b32 v11, 0xffff0000, v10", "v_lshlrev_b32 v10, 16, v10")
            if sel:
                e(f"v_fmac_f32 v10, v14, v{96+8*pr+2*c}", f"v_fmac_f32 v11, v14, v{97+8*pr+2*c}", "v_cvt_pk_bf16_f32 v10, v10, v11",
                  "v_and_b32 v11, 0xffff0000, v10", "v_lshlrev_b32 v10, 16, v10")
            e("v_pk_add_f32 v[8:9], v[8:9], v[10:11]", f"v_cvt_pk_bf16_f32 v{at}, v8, v9")
        e(f"buffer_store_dwordx4 v[{48+4*pr}:{51+4*pr}], v246, s[40:43], 0 offen offset:{64*pr} {OST}")
    stamp("fin")
    if STAMP: e("s_branch L_stamp")
    else: e("s_endpgm")
final(False)
a.lab("L_sel")
final(True)
if STAMP:
    a.lab("L_stamp")
    e("s_waitcnt vmcnt(0)", "s_memtime s[50:51]" if P("CYC", 0) else "s_memrealtime s[50:51]", f"s_cmp_lg_u32 s25, {STAMP-1}", "s_cbranch_scc1 L_end", "s_waitcnt lgkmcnt(0)",
      "s_mul_i32 s30, s2, 80", "s_add_u32 s30, s30, 0x0F000000")
    for q in range(16): e(f"v_mov_b32 v{4+q}, s{86+q}")
    e("v_mov_b32 v20, s50", "v_mov_b32 v21, s51", "v_mov_b32 v22, s50", "v_mov_b32 v23, s51", "v_mov_b32 v1, 0", "s_mov_b64 exec, 1")
    if P("DBGT", 0):
        e("s_lshr_b32 s31, s2, 3", "s_cmp_ge_u32 s31, 26", "s_cbranch_scc1 L_end")
        e("s_load_dwordx2 s[44:45], s[0:1], 72", "s_waitcnt lgkmcnt(0)", "s_and_b32 s45, s45, 0xffff", "s_mov_b32 s46, 256", "s_mov_b32 s47, 0x20000",
          "v_not_b32 v5, v4", "buffer_atomic_umax v5, v1, s[44:47], 0 offen sc1")
        for q in range(9): e(f"buffer_atomic_umax v{4+2*q}, v1, s[44:47], 0 offen offset:{4+4*q} sc1")
    else:
        for q in range(5): e(f"buffer_store_dwordx4 v[{4+4*q}:{7+4*q}], v1, s[16:19], s30 offen offset:{16*q}")
a.lab("L_end"); e("s_endpgm")
a.raw('.section .rodata,"a"\n.p2align 6'); a.raw(kd(K, 256, 102))
sys.stdout.write(a.text())
```
